```python
import torch

def _softmax(x, axis=-1):
    return torch.softmax(x, dim=axis)
def _gelu(x):
    return torch.nn.functional.gelu(x, approximate="tanh")
def _silu(x):
    return torch.nn.functional.silu(x)
def _sigmoid(x):
    return torch.sigmoid(x)
def _layernorm(x, axis=-1, eps=1e-5):
    m = x.mean(dim=axis, keepdim=True)
    v = x.var(dim=axis, keepdim=True, unbiased=False)
    return (x - m) / torch.sqrt(v + eps)
def _scatter_add(tgt, idx, src, axis=0):
    return tgt.clone().index_add_(axis, idx, src)
def _segment_sum(src, seg, n):
    out = torch.zeros((n,) + src.shape[1:], dtype=src.dtype)
    return out.index_add_(0, seg, src)
def _pad(x, pw):
    flat = tuple(v for pair in reversed(pw) for v in pair)
    return torch.nn.functional.pad(x, flat)

kernel_name = 'standalone__mha_block_cached__near_ridge'

def setup_inputs():

    _w = (lambda a: (lambda t: t.to(torch.bfloat16) if t.is_floating_point() else t)(torch.as_tensor(a)))
    B, Sq, D = 8, 128, 512
    H, Sk, Dh = 32, 1024, 128
    return {
        "x": _w((lambda *s: torch.randn(*s, dtype=torch.bfloat16) * 0.8)(B, Sq, D)),
        "k_cache": _w((lambda *s: torch.randn(*s, dtype=torch.bfloat16) * 0.8)(B, H, Sk, Dh)),
        "v_cache": _w((lambda *s: torch.randn(*s, dtype=torch.bfloat16) * 0.05)(B, H, Sk, Dh)),
        "wq": _w((lambda *s: torch.randn(*s, dtype=torch.bfloat16) * 0.8)(D, H * Dh) * (D ** -0.5)),
        "wo": _w((lambda *s: torch.randn(*s, dtype=torch.bfloat16) * 0.05)(H * Dh, D) * ((H * Dh) ** -0.5)),
    }

def reference(x, k_cache, v_cache, wq, wo):
    B, Sq, D = x.shape
    H, Dh = 32, 128
    q = (lambda x, *d: x.permute(*d))((x @ wq).reshape(B, Sq, H, Dh), 0, 2, 1, 3)
    scores = torch.einsum("bhqd,bhkd->bhqk", q, k_cache) * (Dh ** -0.5)
    p = _softmax(scores, axis=-1)
    o = torch.einsum("bhqk,bhkd->bhqd", p, v_cache)
    return (lambda x, *d: x.permute(*d))(o, 0, 2, 1, 3).reshape(B, Sq, H * Dh) @ wo
```

```python
NAME = "standalone__mha_block_cached__near_ridge"
HEADER = """; Kernarg layout for this problem (64 bytes, ptrs only, base s[0:1]):
"""

def kd(name, vgpr, accum, sgpr=102):
    return f""".amdhsa_kernel {name}
  .amdhsa_next_free_vgpr {vgpr}
  .amdhsa_next_free_sgpr {sgpr}
  .amdhsa_accum_offset {accum}
  .amdhsa_group_segment_fixed_size 0
  .amdhsa_kernarg_size 64
  .amdhsa_user_sgpr_count 2
  .amdhsa_user_sgpr_kernarg_segment_ptr 1
  .amdhsa_system_sgpr_workgroup_id_x 1
.end_amdhsa_kernel
"""

class Asm:
    def __init__(self):
        self.l = []
    def __call__(self, s):
        for x in s.split("\n"):
            x = x.strip()
            if x:
                self.l.append(("" if x.endswith(":") else "    ") + x)
    def text(self):
        return "\n".join(self.l) + "\n"

def wrap(body, grid, block, lds, vgpr=256, accum=256, name=None):
    name = name or NAME + "_kernel"
    return (HEADER + f"; @launch grid=({grid},1,1) block=({block},1,1) lds={lds}\n"
            + '.amdgcn_target "amdgcn-amd-amdhsa--gfx950"\n.text\n'
            + f".globl {name}\n.p2align 8\n.type {name},@function\n{name}:\n"
            + body + '.section .rodata,"a"\n.p2align 6\n' + kd(name, vgpr, accum))
```

```python
import sys, struct, math
from common import *

STAMPOFF = 0x8000000
SLOT = 16384


def f32bits(x):
    return struct.unpack("<I", struct.pack("<f", x))[0]


CSCALE = f32bits(math.log2(math.e) / math.sqrt(128.0))


class Cfg:
    kvflags = "nt"
    wflags = ""
    xflags = ""
    stamps = False
    kpos = [1, 3, 5, 7]
    ostore = "sc1"


def stamp(a, cfg, n):
    if cfg.stamps:
        a(f"s_memrealtime s[{70 + 2 * n}:{71 + 2 * n}]")


def stamp_out(a, cfg, nst, slot, label):
    if not cfg.stamps:
        return
    a("s_waitcnt lgkmcnt(0)")
    a(f"s_lshl_b32 s3, s2, 7\ns_add_u32 s3, s3, {STAMPOFF + slot * 8}")
    a("s_add_u32 s58, s58, s3\ns_addc_u32 s59, s59, 0")
    a("v_mov_b32 v2, 0")
    for i in range(nst):
        a(f"v_mov_b32 v4, s{70 + 2 * i}\nv_mov_b32 v5, s{71 + 2 * i}")
        a(f"global_store_dwordx2 v2, v[4:5], s[58:59] offset:{8 * i}")
        a("s_waitcnt vmcnt(0)")


ALLOW = {"k": [0, 1, 2, 3], "v": [4, 5, 6, 7], "w": [4, 5, 6], "x": [7, 8, 9]}


def schedule(cfg):
    iss = []
    ki = 0
    for t in range(9):
        while ki < len(cfg.kpos) and cfg.kpos[ki] <= t:
            iss.append(("k", ki)); ki += 1
        if t < 8:
            iss += [("w", t), ("x", t)]
    nk = len(cfg.kpos)
    cons = [[("w", t), ("x", t)] for t in range(8)]
    cons.append([("k", 0)])
    for t in range(16):
        if t < 15:
            cons.append([("k", t + 1)])
        cons.append([("v", t)])
    for grp in cons[8:]:
        if grp[0] not in iss:
            iss.append(grp[0])
    free = list(range(10))
    slot = {}
    plan = []
    q = list(iss)

    def fill():
        out = []
        while q and any(s in free for s in ALLOW[q[0][0]]):
            t = q.pop(0)
            s = [s for s in free if s in ALLOW[t[0]]][0]
            free.remove(s); slot[t] = s; out.append(t)
        return out
    plan.append(fill())
    prev = []
    for grp in cons:
        assert all(t in slot for t in grp), grp
        for t in prev:
            free.append(slot[t])
        plan.append(fill())
        prev = grp
    assert not q
    return cons, plan, slot


def kernel_a(cfg):
    a = Asm()
    cons, plan, slot = schedule(cfg)
    a("""
    s_cmp_ge_u32 s2, 256
    s_cbranch_scc1 LA_end
    """)
    stamp(a, cfg, 0)
    a("""
    s_load_dwordx8 s[48:55], s[0:1], 0
    s_load_dwordx2 s[58:59], s[0:1], 56
    v_lshrrev_b32 v1, 6, v0
    v_and_b32 v0, 63, v0
    v_readfirstlane_b32 s4, v1
    s_and_b32 s60, s2, 7
    s_lshr_b32 s61, s2, 3
    s_and_b32 s62, s61, 7
    s_lshr_b32 s63, s61, 3
    s_lshl_b32 s65, s63, 1
    s_add_u32 s65, s65, s62
    s_lshl_b32 s3, s60, 2
    s_add_u32 s63, s63, s3
    s_cmp_lt_u32 s4, 4
    s_cbranch_scc1 LA_attn
    """)
    a("""
    s_sub_u32 s4, s4, 4
    s_lshl_b32 s5, s4, 12
    v_lshrrev_b32 v1, 4, v0
    v_and_b32 v2, 15, v0
    v_xor_b32 v3, v1, v2
    v_lshlrev_b32 v3, 4, v3
    v_lshlrev_b32 v4, 8, v1
    v_add_u32 v4, s5, v4
    v_add_u32 v10, v4, v3
    v_xor_b32 v11, 64, v10
    v_xor_b32 v12, 0x80, v10
    v_xor_b32 v13, 0xc0, v10
    v_lshlrev_b32 v3, 2, v1
    v_xor_b32 v3, v3, v2
    v_lshlrev_b32 v3, 4, v3
    v_add_u32 v14, v4, v3
    v_lshlrev_b32 v4, 5, v4
    v_add_u32 v16, v4, v3
    v_add_u32 v17, 0x7c00, v16
    v_add_u32 v18, 0xf800, v16
    v_add_u32 v19, 0x17400, v16
    v_lshrrev_b32 v5, 3, v0
    v_and_b32 v6, 7, v0
    v_xor_b32 v6, v6, v1
    v_lshlrev_b32 v6, 4, v6
    v_lshlrev_b32 v5, 10, v5
    s_lshl_b32 s6, s4, 15
    v_add_u32 v5, s6, v5
    v_add_u32 v20, v5, v6
    v_xor_b32 v21, 64, v20
    v_add_u32 v22, 0x3800, v20
    v_add_u32 v23, 0x5400, v21
    v_add_u32 v21, 0x1c00, v21
    s_waitcnt lgkmcnt(0)
    s_lshl_b32 s3, s62, 5
    s_add_u32 s3, s3, s63
    s_lshl_b32 s3, s3, 18
    s_add_u32 s8, s50, s3
    s_addc_u32 s9, s51, 0
    s_mov_b32 s10, 0x40000
    s_mov_b32 s11, 0x20000
    s_add_u32 s12, s52, s3
    s_addc_u32 s13, s53, 0
    s_mov_b32 s14, 0x40000
    s_mov_b32 s15, 0x20000
    s_lshl_b32 s3, s62, 17
    s_add_u32 s16, s48, s3
    s_addc_u32 s17, s49, 0
    s_mov_b32 s18, 0x20000
    s_mov_b32 s19, 0x20000
    s_mov_b32 s20, s54
    s_mov_b32 s21, s55
    s_mov_b32 s22, 0x400000
    s_mov_b32 s23, 0x20000
    s_lshl_b32 s64, s63, 8
    """)
    issued = []

    def issue(tile):
        kind, t = tile
        issued.append(tile)
        a(f"s_add_u32 m0, s5, {slot[tile] * SLOT}")
        if kind == "k":
            a(f"s_mov_b32 s7, {t * SLOT}")
            for j in range(4):
                a(f"buffer_load_dwordx4 v{10 + j}, s[8:11], s7 offen offset:{j * 1024} {cfg.kvflags} lds")
        elif kind == "v":
            a(f"s_mov_b32 s7, {t * SLOT}")
            for j in range(4):
                a(f"buffer_load_dwordx4 v14, s[12:15], s7 offen offset:{j * 1024} {cfg.kvflags} lds")
        elif kind == "w":
            a(f"s_add_u32 s7, s65, {t}\ns_and_b32 s7, s7, 7\ns_lshl_b32 s7, s7, 19\ns_add_u32 s7, s7, s64")
            for j in range(4):
                a(f"buffer_load_dwordx4 v{16 + j}, s[20:23], s7 offen offset:{j * 1024} {cfg.wflags} lds")
        elif kind == "x":
            a(f"s_add_u32 s7, s65, {t}\ns_and_b32 s7, s7, 7\ns_lshl_b32 s7, s7, 7")
            for j in range(4):
                a(f"buffer_load_dwordx4 v{20 + j}, s[16:19], s7 offen offset:{j * 1024} {cfg.xflags} lds")
    for t in plan[0]:
        issue(t)
    for n, grp in enumerate(cons):
        last = max(issued.index(t) for t in grp)
        cnt = min(63, (len(issued) - 1 - last) * 4)
        a(f"s_waitcnt vmcnt({cnt})")
        a("s_barrier")
        for t in plan[n + 1]:
            issue(t)
    a("s_endpgm")

    KA, VA, XA = 2, 10, 14
    M, MC, ALPHA, L0, L1, T0, T1, OOFF = 18, 19, 20, 21, 22, 23, 24, 25
    Q = 28
    O = 64
    S = [128, 160]
    F = 192
    NF = 8
    XF = 224
    a("LA_attn:")
    a(f"""
    v_and_b32 v1, 31, v0
    v_lshrrev_b32 v26, 5, v0
    v_and_b32 v{T0}, 0x13, v1
    v_and_b32 v{T1}, 4, v1
    v_lshlrev_b32 v{T1}, 1, v{T1}
    v_or_b32 v{T0}, v{T0}, v{T1}
    v_and_b32 v{T1}, 8, v1
    v_lshrrev_b32 v{T1}, 1, v{T1}
    v_or_b32 v{T0}, v{T0}, v{T1}
    v_and_b32 v{T1}, 15, v{T0}
    v_xor_b32 v{T1}, v{T1}, v26
    v_lshlrev_b32 v{T1}, 4, v{T1}
    v_lshlrev_b32 v{T0}, 8, v{T0}
    v_add_u32 v{KA}, v{T0}, v{T1}
    """)
    for s in range(1, 8):
        a(f"v_xor_b32 v{KA + s}, {s * 32}, v{KA}")
    a(f"""
    v_bfe_u32 v{T0}, v0, 2, 2
    v_lshlrev_b32 v{T1}, 3, v26
    v_add_u32 v{T1}, v{T1}, v{T0}
    v_lshlrev_b32 v{T1}, 8, v{T1}
    v_lshlrev_b32 v{T0}, 6, v{T0}
    v_add_u32 v{T1}, v{T1}, v{T0}
    v_bfe_u32 v{T0}, v0, 4, 1
    v_lshlrev_b32 v{T0}, 5, v{T0}
    v_add_u32 v{T1}, v{T1}, v{T0}
    v_and_b32 v{T0}, 1, v0
    v_lshlrev_b32 v{T0}, 4, v{T0}
    v_add_u32 v{T1}, v{T1}, v{T0}
    v_and_b32 v{T0}, 2, v0
    v_lshlrev_b32 v{T0}, 2, v{T0}
    v_add_u32 v{T1}, v{T1}, v{T0}
    v_add_u32 v{VA}, {4 * SLOT}, v{T1}
    v_xor_b32 v{VA + 1}, 64, v{VA}
    v_xor_b32 v{VA + 2}, 0x80, v{VA}
    v_xor_b32 v{VA + 3}, 0xc0, v{VA}
    v_bfe_u32 v{T0}, v0, 1, 3
    v_xor_b32 v{T0}, v{T0}, v26
    v_lshlrev_b32 v{T0}, 4, v{T0}
    v_lshlrev_b32 v{T1}, 7, v1
    v_add_u32 v{T0}, v{T0}, v{T1}
    s_lshl_b32 s5, s4, 12
    s_add_u32 s5, s5, {6 * SLOT}
    v_add_u32 v{XA}, s5, v{T0}
    v_xor_b32 v{XA + 1}, 32, v{XA}
    v_xor_b32 v{XA + 2}, 64, v{XA}
    v_xor_b32 v{XA + 3}, 0x60, v{XA}
    v_lshlrev_b32 v{OOFF}, 4, v0
    s_mov_b32 s6, {CSCALE}
    s_waitcnt lgkmcnt(0)
    s_lshl_b32 s3, s62, 2
    s_add_u32 s3, s3, s4
    s_lshl_b32 s3, s3, 5
    s_add_u32 s3, s3, s63
    s_lshl_b32 s3, s3, 13
    s_add_u32 s28, s58, s3
    s_addc_u32 s29, s59, 0
    s_mov_b32 s30, 0x2000
    s_mov_b32 s31, 0x20000
    """)

    def vr(b, n):
        return f"v[{b}:{b + n - 1}]"

    def mfma_phase(reads, mfmas, fillers, head=(), pre=(), ahead=4):
        n = len(mfmas)
        seq = []
        for r in pre:
            a(r); seq.append(-1)
        for i in range(min(ahead, n)):
            for r in reads[i]:
                a(r); seq.append(i)
        for h in head:
            a(h)
        for i in range(n):
            later = sum(1 for x in seq if x > i)
            a(f"s_waitcnt lgkmcnt({later})")
            a(mfmas[i])
            if i + ahead < n:
                for r in reads[i + ahead]:
                    a(r); seq.append(i + ahead)
            for f in fillers[i]:
                a(f)

    fcnt = [0]

    def nextf():
        r = F + 4 * (fcnt[0] % NF)
        fcnt[0] += 1
        return r

    def trreads(sl, ks, db, dst):
        off = (sl - 4) * SLOT + ks * 4096
        return [f"ds_read_b64_tr_b16 {vr(dst, 2)}, v{VA + db} offset:{off}",
                f"ds_read_b64_tr_b16 {vr(dst + 2, 2)}, v{VA + db} offset:{off + 1024}"]

    for j in range(8):
        a("s_barrier")
        if j == 0:
            stamp(a, cfg, 1)
            if cfg.stamps: a("s_waitcnt lgkmcnt(0)")
        ws_, xs_ = slot[("w", j)], slot[("x", j)]
        reads, mf = [], []
        for ks in range(4):
            for db in range(4):
                f = nextf()
                r = trreads(ws_, ks, db, f)
                if db == 0:
                    r = [f"ds_read_b128 {vr(XF + 4 * ks, 4)}, v{XA + ks} offset:{(xs_ - 6) * SLOT}"] + r
                reads.append(r)
                c = "0" if (j == 0 and ks == 0) else vr(O + 16 * db, 16)
                mf.append(f"v_mfma_f32_32x32x16_bf16 {vr(O + 16 * db, 16)}, {vr(f, 4)}, {vr(XF + 4 * ks, 4)}, {c}")
        mfma_phase(reads, mf, [[] for _ in mf])
    a("s_nop 7\ns_nop 1")
    for i in range(32):
        a(f"v_cvt_pk_bf16_f32 v{Q + i}, v{O + 2 * i}, v{O + 2 * i + 1}")

    def qk(tile, sb, fillers, head=()):
        sl = slot[("k", tile)]
        reads, mf = [], []
        for kb in range(2):
            for s in range(8):
                f = nextf()
                reads.append([f"ds_read_b128 {vr(f, 4)}, v{KA + s} offset:{sl * SLOT + kb * 8192}"])
                c = "0" if s == 0 else vr(sb + 16 * kb, 16)
                mf.append(f"v_mfma_f32_32x32x16_bf16 {vr(sb + 16 * kb, 16)}, {vr(f, 4)}, {vr(Q + 4 * s, 4)}, {c}")
        mfma_phase(reads, mf, fillers, head=head)

    def maxchain(sb, first):
        ins = []
        for c, (t, base) in enumerate(((T0, sb), (T1, sb + 16))):
            ch = []
            if first or c == 1:
                ch.append(f"v_max3_f32 v{t}, v{base}, v{base + 1}, v{base + 2}")
                rest = list(range(base + 3, base + 16))
            else:
                ch.append(f"v_max3_f32 v{t}, v{base}, v{base + 1}, v{M}")
                rest = list(range(base + 2, base + 16))
            while len(rest) >= 2:
                ch.append(f"v_max3_f32 v{t}, v{t}, v{rest[0]}, v{rest[1]}"); rest = rest[2:]
            ins.append((ch, rest))
        out = []
        for x, y in zip(ins[0][0], ins[1][0]):
            out += [x, y]
        n = min(len(ins[0][0]), len(ins[1][0]))
        out += ins[0][0][n:] + ins[1][0][n:]
        rest = ins[0][1] + ins[1][1]
        if len(rest) == 2:
            out.append(f"v_max3_f32 v{T0}, v{T0}, v{rest[0]}, v{rest[1]}")
            out.append(f"v_max_f32 v{T0}, v{T0}, v{T1}")
        else:
            out.append(f"v_max3_f32 v{T0}, v{T0}, v{T1}, v{rest[0]}")
        return out

    def maxfin(first):
        out = [f"v_mov_b32 v{T1}, v{T0}", "s_nop 1", f"v_permlane32_swap_b32 v{T0}, v{T1}",
               f"v_max_f32 v{M}, v{T0}, v{T1}"]
        if first:
            out += [f"v_mul_f32 v{MC}, s6, v{M}"]
        else:
            out += [f"v_mul_f32 v{T0}, s6, v{M}", f"v_sub_f32 v{T1}, v{MC}, v{T0}", f"v_mov_b32 v{MC}, v{T0}",
                    f"v_exp_f32 v{ALPHA}, v{T1}", "s_nop 0",
                    f"v_mul_f32 v{L0}, v{L0}, v{ALPHA}", f"v_mul_f32 v{L1}, v{L1}, v{ALPHA}"]
        return out

    def softmax2(sb, first, ngap=16):
        gaps = [[] for _ in range(17)]
        for g in range(16):
            e0, e1 = sb + 2 * g, sb + 2 * g + 1
            gaps[g] += [f"v_fma_f32 v{e0}, v{e0}, s6, -v{MC}", f"v_fma_f32 v{e1}, v{e1}, s6, -v{MC}",
                        f"v_exp_f32 v{e0}, v{e0}", f"v_exp_f32 v{e1}, v{e1}"]
            dst = sb + 8 * (g // 4) + (g % 4)
            if first and g == 0:
                post = [f"v_mov_b32 v{L0}, v{e0}", f"v_mov_b32 v{L1}, v{e1}"]
            else:
                post = [f"v_add_f32 v{L0}, v{L0}, v{e0}", f"v_add_f32 v{L1}, v{L1}, v{e1}"]
            post.append(f"v_cvt_pk_bf16_f32 v{dst}, v{e0}, v{e1}")
            gaps[g + 1] = post + gaps[g + 1]
        return gaps

    a("s_barrier")
    stamp(a, cfg, 2)
    if cfg.stamps: a("s_waitcnt lgkmcnt(0)")
    qk(0, S[0], [[] for _ in range(16)])
    a("s_nop 7\ns_nop 3")
    for x in maxchain(S[0], True) + maxfin(True):
        a(x)
    for t in range(16):
        cur, nxt = S[t % 2], S[(t + 1) % 2]
        gaps = softmax2(cur, t == 0)
        if t < 15:
            a("s_barrier")
            qk(t + 1, nxt, gaps[1:], head=gaps[0])
        else:
            for g in gaps:
                for x in g:
                    a(x)
                a("s_nop 0")
        a("s_barrier")
        if t == 15:
            stamp(a, cfg, 3)
            if cfg.stamps: a("s_waitcnt lgkmcnt(0)")
        sl = slot[("v", t)]
        reads, mf = [], []
        for db in range(4):
            for ks in range(4):
                f = nextf()
                reads.append(trreads(sl, ks, db, f))
                c = "0" if (t == 0 and ks == 0) else vr(O + 16 * db, 16)
                mf.append(f"v_mfma_f32_32x32x16_bf16 {vr(O + 16 * db, 16)}, {vr(f, 4)}, {vr(cur + 8 * ks, 4)}, {c}")
        fill = [[] for _ in range(16)]
        head = []
        if t > 0:
            resc = lambda db: [f"v_mul_f32 v{O + 16 * db + i}, v{ALPHA}, v{O + 16 * db + i}" for i in range(16)]
            head = resc(0) + ["s_nop 0"]
            for db in range(1, 4):
                r = resc(db)
                g0 = 4 * (db - 1)
                fill[g0] += r[0:5]; fill[g0 + 1] += r[5:10]; fill[g0 + 2] += r[10:16]
        tail = []
        if t < 15:
            mc = maxchain(nxt, False)
            fill[3] += mc[0:4]; fill[7] += mc[4:8]; fill[11] += mc[8:12]; fill[12] += mc[12:]
            fin = maxfin(False)
            fill[13] += fin[0:4]; fill[14] += fin[4:9]; fill[15] += fin[9:]
        mfma_phase(reads, mf, fill, head=head)
    a(f"""
    v_add_f32 v{L0}, v{L0}, v{L1}
    v_mov_b32 v{L1}, v{L0}
    s_nop 1
    v_permlane32_swap_b32 v{L0}, v{L1}
    v_add_f32 v{L0}, v{L0}, v{L1}
    v_rcp_f32 v{L0}, v{L0}
    s_nop 7
    """)
    for fi in range(8):
        b = O + 8 * fi
        for i in range(8):
            a(f"v_mul_f32 v{b + i}, v{L0}, v{b + i}")
        for i in range(4):
            a(f"v_cvt_pk_bf16_f32 v{b + i}, v{b + 2 * i}, v{b + 2 * i + 1}")
        if fi == 4:
            a(f"v_add_u32 v{OOFF}, 4096, v{OOFF}")
        a(f"buffer_store_dwordx4 {vr(b, 4)}, v{OOFF}, s[28:31], 0 offen offset:{(fi % 4) * 1024} {cfg.ostore}")
    if cfg.stamps:
        stamp(a, cfg, 4)
        a("s_waitcnt vmcnt(0)")
        stamp(a, cfg, 5)
        a("s_cmp_lg_u32 s4, 0\ns_cbranch_scc1 LA_end")
        stamp_out(a, cfg, 6, 0, "A")
    a("LA_end:\ns_endpgm")
    return a.text()


def kernel_b(cfg):
    a = Asm()

    def vr(b, n):
        return f"v[{b}:{b + n - 1}]"
    a("""
    s_cmp_ge_u32 s2, 256
    s_cbranch_scc1 LB_end
    """)
    stamp(a, cfg, 0)
    ACC, OF, F = 16, 48, 176
    a(f"""
    s_load_dwordx4 s[52:55], s[0:1], 32
    s_load_dwordx2 s[58:59], s[0:1], 56
    v_lshrrev_b32 v1, 6, v0
    v_and_b32 v0, 63, v0
    v_readfirstlane_b32 s4, v1
    s_and_b32 s62, s2, 7
    s_lshr_b32 s61, s2, 3
    s_lshr_b32 s63, s61, 3
    s_and_b32 s64, s61, 7
    s_lshl_b32 s65, s63, 1
    s_add_u32 s65, s65, s64
    s_mul_i32 s5, s4, 20480
    v_lshrrev_b32 v1, 3, v0
    v_lshlrev_b32 v1, 10, v1
    v_bfe_u32 v2, v0, 4, 1
    v_lshlrev_b32 v2, 2, v2
    v_and_b32 v3, 7, v0
    v_xor_b32 v2, v2, v3
    v_lshlrev_b32 v2, 4, v2
    v_add_u32 v4, v1, v2
    v_add_u32 v5, 0x1c00, v4
    v_add_u32 v6, 0x3800, v4
    v_add_u32 v7, 0x5400, v4
    v_lshlrev_b32 v8, 4, v0
    v_lshrrev_b32 v12, 5, v0
    v_bfe_u32 v1, v0, 2, 2
    v_lshlrev_b32 v2, 3, v12
    v_add_u32 v2, v2, v1
    v_lshlrev_b32 v2, 7, v2
    v_lshrrev_b32 v1, 1, v1
    v_lshlrev_b32 v1, 6, v1
    v_add_u32 v2, v2, v1
    v_bfe_u32 v1, v0, 4, 1
    v_lshlrev_b32 v1, 5, v1
    v_add_u32 v2, v2, v1
    v_and_b32 v1, 1, v0
    v_lshlrev_b32 v1, 4, v1
    v_add_u32 v2, v2, v1
    v_and_b32 v1, 2, v0
    v_lshlrev_b32 v1, 2, v1
    v_add_u32 v2, v2, v1
    v_add_u32 v10, s5, v2
    v_xor_b32 v11, 64, v10
    s_waitcnt lgkmcnt(0)
    s_lshl_b32 s3, s4, 19
    s_add_u32 s24, s52, s3
    s_addc_u32 s25, s53, 0
    s_mov_b32 s26, 0x80000
    s_mov_b32 s27, 0x20000
    s_lshl_b32 s3, s62, 2
    s_add_u32 s3, s3, s63
    s_lshl_b32 s3, s3, 3
    s_add_u32 s3, s3, s4
    s_lshl_b32 s3, s3, 15
    s_add_u32 s28, s58, s3
    s_addc_u32 s29, s59, 0
    s_mov_b32 s30, 0x8000
    s_mov_b32 s31, 0x20000
    s_mov_b32 s32, s54
    s_mov_b32 s33, s55
    s_mov_b32 s34, 0x100000
    s_mov_b32 s35, 0x20000
    s_lshl_b32 s66, s64, 7
    """)
    vm = []

    def dma(c):
        a(f"s_add_u32 s7, s65, {c}\ns_and_b32 s7, s7, 7\ns_lshl_b32 s7, s7, 16\ns_add_u32 s7, s7, s66")
        for hlf in range(2):
            a(f"s_add_u32 m0, s5, {(c % 2) * 8192 + hlf * 4096}")
            if hlf:
                a("s_add_u32 s7, s7, 0x8000")
            else:
                a("s_nop 0")
            for j in range(4):
                a(f"buffer_load_dwordx4 v{4 + j}, s[24:27], s7 offen offset:{j * 1024} lds")
                vm.append(("w", c))

    def oload(c):
        a(f"s_add_u32 s7, s65, {c}\ns_and_b32 s7, s7, 7\ns_lshl_b32 s7, s7, 12")
        for j in range(4):
            a(f"buffer_load_dwordx4 {vr(OF + 16 * c + 4 * j, 4)}, v8, s[28:31], s7 offen offset:{j * 1024}")
            vm.append(("o", c))
    dma(0); oload(0); dma(1); oload(1); oload(2)
    for c in range(8):
        last = max(i for i, x in enumerate(vm) if x[1] == c)
        a(f"s_waitcnt vmcnt({len(vm) - 1 - last})")
        for ks in range(4):
            for cbk in range(2):
                f = F + 4 * (2 * ks + cbk)
                off = (c % 2) * 8192 + ks * 2048
                a(f"ds_read_b64_tr_b16 {vr(f, 2)}, v{10 + cbk} offset:{off}")
                a(f"ds_read_b64_tr_b16 {vr(f + 2, 2)}, v{10 + cbk} offset:{off + 512}")
                if ks == 1 and cbk == 1:
                    a("s_waitcnt lgkmcnt(4)")
        a("s_waitcnt lgkmcnt(0)")
        if c + 2 < 8:
            dma(c + 2)
        if c + 3 < 8:
            oload(c + 3)
        for ks in range(4):
            for cbk in range(2):
                f = F + 4 * (2 * ks + cbk)
                cc = "0" if (c == 0 and ks == 0) else vr(ACC + 16 * cbk, 16)
                a(f"v_mfma_f32_32x32x16_bf16 {vr(ACC + 16 * cbk, 16)}, {vr(f, 4)}, {vr(OF + 16 * c + 4 * ks, 4)}, {cc}")
    stamp(a, cfg, 1)
    a("v_add_u32 v9, s5, v8\ns_nop 7\ns_nop 3")
    for ch in range(8):
        a(f"ds_write_b128 v9, {vr(ACC + 4 * ch, 4)} offset:{ch * 1024}")
    a("s_waitcnt lgkmcnt(0)\ns_barrier")
    a("s_lshl_b32 s3, s4, 10\nv_add_u32 v9, s3, v8")
    a(f"v_add_u32 v13, {4 * 20480}, v9")
    for w in range(8):
        a(f"ds_read_b128 {vr(OF + 4 * w, 4)}, v{9 if w < 4 else 13} offset:{(w % 4) * 20480}")
    a("""
    s_lshl_b32 s3, s62, 2
    s_add_u32 s3, s3, s63
    s_lshl_b32 s3, s3, 15
    s_add_u32 s3, s3, s66
    s_lshr_b32 s7, s4, 1
    s_lshl_b32 s7, s7, 5
    s_add_u32 s3, s3, s7
    s_and_b32 s7, s4, 1
    s_lshl_b32 s7, s7, 3
    s_add_u32 s3, s3, s7
    v_and_b32 v1, 31, v0
    v_lshlrev_b32 v1, 10, v1
    v_lshlrev_b32 v2, 4, v12
    v_add_u32 v1, v1, v2
    """)
    for w in range(1, 8):
        a(f"s_waitcnt lgkmcnt({7 - w})")
        for i in range(4):
            a(f"v_add_f32 v{OF + i}, v{OF + i}, v{OF + 4 * w + i}")
    a(f"v_cvt_pk_bf16_f32 v{OF}, v{OF}, v{OF + 1}\nv_cvt_pk_bf16_f32 v{OF + 1}, v{OF + 2}, v{OF + 3}")
    a(f"buffer_store_dwordx2 {vr(OF, 2)}, v1, s[32:35], s3 offen")
    if cfg.stamps:
        a("s_waitcnt vmcnt(0)")
        stamp(a, cfg, 2)
        a("s_cmp_lg_u32 s4, 0\ns_cbranch_scc1 LB_end")
        stamp_out(a, cfg, 3, 6, "B")
    a("LB_end:\ns_endpgm")
    return a.text()


def build(cfg):
    ka, kb = NAME + "_kernel", "oproj_kernel"
    s = HEADER
    s += f"; @launch kernel={ka} grid=(256,1,1) block=(512,1,1) lds=163840\n"
    s += f"; @launch kernel={kb} grid=(256,1,1) block=(512,1,1) lds=163840\n"
    s += '.amdgcn_target "amdgcn-amd-amdhsa--gfx950"\n.text\n'
    for name, body in ((ka, kernel_a(cfg)), (kb, kernel_b(cfg))):
        s += f".globl {name}\n.p2align 8\n.type {name},@function\n{name}:\n" + body
    s += '.section .rodata,"a"\n.p2align 6\n' + kd(ka, 256, 256) + ".p2align 6\n" + kd(kb, 256, 256)
    return s


if __name__ == "__main__":
    def mk(name, **kw):
        c = Cfg()
        for k, v in kw.items():
            setattr(c, k, v)
        open(name, "w").write(build(c))
    mk("v1.s")
    mk("v1_st.s", stamps=True)
    mk("v1_def.s", kvflags="")
    mk("v1_wnt.s", wflags="nt")
    mk("v1_plain.s", ostore="")
```

```python
import sys, struct, math
from common import *

STAMPOFF = 0x8000000
SLOT = 16384


def f32bits(x):
    return struct.unpack("<I", struct.pack("<f", x))[0]


CSCALE = f32bits(math.log2(math.e) / math.sqrt(128.0))


class Cfg:
    kvflags = "nt"
    wflags = ""
    xflags = ""
    stamps = False
    kpos = [1, 3, 5, 7]
    ostore = "sc1"
    cpf = True
    stampins = "s_memrealtime"
    nodma = False
    skip_lds = 0
    skip_from = 1
    skip_resc = False
    skip_valu = False
    skip_mfma = False
    mfma16 = False
    trace = False


def stamp(a, cfg, n):
    if cfg.stamps:
        a(f"{cfg.stampins} s[{70 + 2 * n}:{71 + 2 * n}]")


def stamp_out(a, cfg, nst, slot, label):
    if not cfg.stamps:
        return
    a("s_waitcnt lgkmcnt(0)")
    a(f"s_lshl_b32 s3, s2, 7\ns_add_u32 s3, s3, {STAMPOFF + slot * 8}")
    a("s_add_u32 s58, s58, s3\ns_addc_u32 s59, s59, 0")
    a("v_mov_b32 v2, 0")
    for i in range(nst):
        a(f"v_mov_b32 v4, s{70 + 2 * i}\nv_mov_b32 v5, s{71 + 2 * i}")
        a(f"global_store_dwordx2 v2, v[4:5], s[58:59] offset:{8 * i}")
        a("s_waitcnt vmcnt(0)")


ALLOW = {"k": [0, 1, 2, 3], "v": [4, 5, 6, 7], "w": [4, 5, 6], "x": [7, 8, 9]}


def schedule(cfg):
    iss = []
    ki = 0
    for t in range(9):
        while ki < len(cfg.kpos) and cfg.kpos[ki] <= t:
            iss.append(("k", ki)); ki += 1
        if t < 8:
            iss += [("w", t), ("x", t)]
    nk = len(cfg.kpos)
    cons = [[("w", t), ("x", t)] for t in range(8)]
    cons.append([("k", 0)])
    for t in range(16):
        if t < 15:
            cons.append([("k", t + 1)])
        cons.append([("v", t)])
    for grp in cons[8:]:
        if grp[0] not in iss:
            iss.append(grp[0])
    free = list(range(10))
    slot = {}
    plan = []
    q = list(iss)

    def fill():
        out = []
        while q and any(s in free for s in ALLOW[q[0][0]]):
            t = q.pop(0)
            s = [s for s in free if s in ALLOW[t[0]]][0]
            free.remove(s); slot[t] = s; out.append(t)
        return out
    plan.append(fill())
    prev = []
    for grp in cons:
        assert all(t in slot for t in grp), grp
        for t in prev:
            free.append(slot[t])
        plan.append(fill())
        prev = grp
    assert not q
    return cons, plan, slot


def kernel_a(cfg):
    a = Asm()
    cons, plan, slot = schedule(cfg)
    a("""
    s_cmp_ge_u32 s2, 256
    s_cbranch_scc1 LA_end
    """)
    stamp(a, cfg, 0)
    a("""
    s_load_dwordx8 s[48:55], s[0:1], 0
    s_load_dwordx2 s[58:59], s[0:1], 56
    v_lshrrev_b32 v1, 6, v0
    v_and_b32 v0, 63, v0
    v_readfirstlane_b32 s4, v1
    s_and_b32 s60, s2, 7
    s_lshr_b32 s61, s2, 3
    s_and_b32 s62, s61, 7
    s_lshr_b32 s63, s61, 3
    s_lshl_b32 s65, s63, 1
    s_add_u32 s65, s65, s62
    s_lshl_b32 s3, s60, 2
    s_add_u32 s63, s63, s3
    s_cmp_lt_u32 s4, 4
    s_cbranch_scc1 LA_attn
    """)
    a("""
    s_sub_u32 s4, s4, 4
    s_lshl_b32 s5, s4, 12
    v_lshrrev_b32 v1, 4, v0
    v_and_b32 v2, 15, v0
    v_xor_b32 v3, v1, v2
    v_lshlrev_b32 v3, 4, v3
    v_lshlrev_b32 v4, 8, v1
    v_add_u32 v4, s5, v4
    v_add_u32 v10, v4, v3
    v_xor_b32 v11, 64, v10
    v_xor_b32 v12, 0x80, v10
    v_xor_b32 v13, 0xc0, v10
    v_lshlrev_b32 v3, 2, v1
    v_xor_b32 v3, v3, v2
    v_lshlrev_b32 v3, 4, v3
    v_add_u32 v14, v4, v3
    v_lshlrev_b32 v4, 5, v4
    v_add_u32 v16, v4, v3
    v_add_u32 v17, 0x7c00, v16
    v_add_u32 v18, 0xf800, v16
    v_add_u32 v19, 0x17400, v16
    v_lshrrev_b32 v5, 3, v0
    v_and_b32 v6, 7, v0
    v_xor_b32 v6, v6, v1
    v_lshlrev_b32 v6, 4, v6
    v_lshlrev_b32 v5, 10, v5
    s_lshl_b32 s6, s4, 15
    v_add_u32 v5, s6, v5
    v_add_u32 v20, v5, v6
    v_xor_b32 v21, 64, v20
    v_add_u32 v22, 0x3800, v20
    v_add_u32 v23, 0x5400, v21
    v_add_u32 v21, 0x1c00, v21
    s_waitcnt lgkmcnt(0)
    s_lshl_b32 s3, s62, 5
    s_add_u32 s3, s3, s63
    s_lshl_b32 s3, s3, 18
    s_add_u32 s8, s50, s3
    s_addc_u32 s9, s51, 0
    s_mov_b32 s10, 0x40000
    s_mov_b32 s11, 0x20000
    s_add_u32 s12, s52, s3
    s_addc_u32 s13, s53, 0
    s_mov_b32 s14, 0x40000
    s_mov_b32 s15, 0x20000
    s_lshl_b32 s3, s62, 17
    s_add_u32 s16, s48, s3
    s_addc_u32 s17, s49, 0
    s_mov_b32 s18, 0x20000
    s_mov_b32 s19, 0x20000
    s_mov_b32 s20, s54
    s_mov_b32 s21, s55
    s_mov_b32 s22, 0x400000
    s_mov_b32 s23, 0x20000
    s_lshl_b32 s64, s63, 8
    """)
    issued = []
    if cfg.trace:
        a("s_memrealtime s[72:73]\ns_memtime s[74:75]\ns_waitcnt lgkmcnt(0)\nv_mov_b32 v100, s72\nv_mov_b32 v101, s72\nv_mov_b32 v102, s74")

    def issue(tile):
        kind, t = tile
        issued.append(tile)
        if cfg.nodma and kind in "kv" and t >= 4: return
        a(f"s_add_u32 m0, s5, {slot[tile] * SLOT}")
        if kind == "k":
            a(f"s_mov_b32 s7, {t * SLOT}")
            for j in range(4):
                a(f"buffer_load_dwordx4 v{10 + j}, s[8:11], s7 offen offset:{j * 1024} {cfg.kvflags} lds")
        elif kind == "v":
            a(f"s_mov_b32 s7, {t * SLOT}")
            for j in range(4):
                a(f"buffer_load_dwordx4 v14, s[12:15], s7 offen offset:{j * 1024} {cfg.kvflags} lds")
        elif kind == "w":
            a(f"s_add_u32 s7, s65, {t}\ns_and_b32 s7, s7, 7\ns_lshl_b32 s7, s7, 19\ns_add_u32 s7, s7, s64")
            for j in range(4):
                a(f"buffer_load_dwordx4 v{16 + j}, s[20:23], s7 offen offset:{j * 1024} {cfg.wflags} lds")
        elif kind == "x":
            a(f"s_add_u32 s7, s65, {t}\ns_and_b32 s7, s7, 7\ns_lshl_b32 s7, s7, 7")
            for j in range(4):
                a(f"buffer_load_dwordx4 v{20 + j}, s[16:19], s7 offen offset:{j * 1024} {cfg.xflags} lds")
    for t in plan[0]:
        issue(t)
    for n, grp in enumerate(cons):
        last = max(issued.index(t) for t in grp)
        cnt = min(63, (len(issued) - 1 - last) * 4)
        a(f"s_waitcnt vmcnt({cnt})")
        if cfg.trace: a("s_memrealtime s[70:71]")
        a("s_barrier")
        if cfg.trace: a("s_memrealtime s[72:73]\ns_memtime s[74:75]")
        for t in plan[n + 1]:
            issue(t)
        if cfg.trace:
            a(f"s_waitcnt lgkmcnt(0)\nv_writelane_b32 v100, s70, {n+1}\nv_writelane_b32 v101, s72, {n+1}\nv_writelane_b32 v102, s74, {n+1}")
    if cfg.trace:
        a(f"""
        s_cmp_lg_u32 s4, 0
        s_cbranch_scc1 LA_end
        s_mul_i32 s3, s2, 768
        s_add_u32 s3, s3, {STAMPOFF}
        s_add_u32 s58, s58, s3
        s_addc_u32 s59, s59, 0
        v_lshlrev_b32 v2, 2, v0
        global_store_dword v2, v100, s[58:59]
        global_store_dword v2, v101, s[58:59] offset:256
        global_store_dword v2, v102, s[58:59] offset:512
        """)
    a("s_endpgm")

    KA, VA, XA = 2, 10, 14
    M, MC, ALPHA, L0, L1, T0, T1, OOFF = 18, 19, 20, 21, 22, 23, 24, 25
    Q = 28
    O = 64
    S = [128, 160]
    F = 192
    NF = 8
    XF = 224
    a("LA_attn:")
    if cfg.cpf:
        a("""
        s_getpc_b64 s[40:41]
        LA_pc:
        s_sub_u32 s40, s40, LA_pc-{0}_kernel
        s_subb_u32 s41, s41, 0
        s_lshl_b32 s3, s61, 2
        s_add_u32 s3, s3, s4
        s_lshl_b32 s3, s3, 9
        v_and_b32 v1, 3, v0
        v_lshlrev_b32 v1, 7, v1
        v_add_u32 v1, s3, v1
        v_min_u32 v1, LA_end-{0}_kernel, v1
        global_load_dword v27, v1, s[40:41]
        """.format(NAME))
    a(f"""
    v_and_b32 v1, 31, v0
    v_lshrrev_b32 v26, 5, v0
    v_and_b32 v{T0}, 0x13, v1
    v_and_b32 v{T1}, 4, v1
    v_lshlrev_b32 v{T1}, 1, v{T1}
    v_or_b32 v{T0}, v{T0}, v{T1}
    v_and_b32 v{T1}, 8, v1
    v_lshrrev_b32 v{T1}, 1, v{T1}
    v_or_b32 v{T0}, v{T0}, v{T1}
    v_and_b32 v{T1}, 15, v{T0}
    v_xor_b32 v{T1}, v{T1}, v26
    v_lshlrev_b32 v{T1}, 4, v{T1}
    v_lshlrev_b32 v{T0}, 8, v{T0}
    v_add_u32 v{KA}, v{T0}, v{T1}
    """)
    for s in range(1, 8):
        a(f"v_xor_b32 v{KA + s}, {s * 32}, v{KA}")
    a(f"""
    v_bfe_u32 v{T0}, v0, 2, 2
    v_lshlrev_b32 v{T1}, 3, v26
    v_add_u32 v{T1}, v{T1}, v{T0}
    v_lshlrev_b32 v{T1}, 8, v{T1}
    v_lshlrev_b32 v{T0}, 6, v{T0}
    v_add_u32 v{T1}, v{T1}, v{T0}
    v_bfe_u32 v{T0}, v0, 4, 1
    v_lshlrev_b32 v{T0}, 5, v{T0}
    v_add_u32 v{T1}, v{T1}, v{T0}
    v_and_b32 v{T0}, 1, v0
    v_lshlrev_b32 v{T0}, 4, v{T0}
    v_add_u32 v{T1}, v{T1}, v{T0}
    v_and_b32 v{T0}, 2, v0
    v_lshlrev_b32 v{T0}, 2, v{T0}
    v_add_u32 v{T1}, v{T1}, v{T0}
    v_add_u32 v{VA}, {4 * SLOT}, v{T1}
    v_xor_b32 v{VA + 1}, 64, v{VA}
    v_xor_b32 v{VA + 2}, 0x80, v{VA}
    v_xor_b32 v{VA + 3}, 0xc0, v{VA}
    v_bfe_u32 v{T0}, v0, 1, 3
    v_xor_b32 v{T0}, v{T0}, v26
    v_lshlrev_b32 v{T0}, 4, v{T0}
    v_lshlrev_b32 v{T1}, 7, v1
    v_add_u32 v{T0}, v{T0}, v{T1}
    s_lshl_b32 s5, s4, 12
    s_add_u32 s5, s5, {6 * SLOT}
    v_add_u32 v{XA}, s5, v{T0}
    v_xor_b32 v{XA + 1}, 32, v{XA}
    v_xor_b32 v{XA + 2}, 64, v{XA}
    v_xor_b32 v{XA + 3}, 0x60, v{XA}
    v_lshlrev_b32 v{OOFF}, 4, v0
    s_mov_b32 s6, {CSCALE}
    s_waitcnt lgkmcnt(0)
    s_lshl_b32 s3, s62, 2
    s_add_u32 s3, s3, s4
    s_lshl_b32 s3, s3, 5
    s_add_u32 s3, s3, s63
    s_lshl_b32 s3, s3, 13
    s_add_u32 s28, s58, s3
    s_addc_u32 s29, s59, 0
    s_mov_b32 s30, 0x2000
    s_mov_b32 s31, 0x20000
    """)

    def vr(b, n):
        return f"v[{b}:{b + n - 1}]"

    phase_no = [0]

    def mfma_phase(reads, mfmas, fillers, head=(), pre=(), ahead=4):
        n = len(mfmas)
        phase_no[0] += 1
        if cfg.skip_lds and phase_no[0] > cfg.skip_from:
            reads = [r if i % cfg.skip_lds == 0 else [] for i, r in enumerate(reads)]
        if cfg.skip_resc:
            keep = lambda x: not (x.startswith("v_mul_f32") or x.startswith("v_fma_f32"))
            fillers = [[x for x in f if keep(x)] for f in fillers]; head = [x for x in head if keep(x)]
        if cfg.skip_valu:
            fillers = [[] for _ in fillers]; head = []
        if cfg.mfma16:
            import re
            def conv(m, k):
                g = re.match(r"v_mfma_f32_32x32x16_bf16 v\[(\d+):\d+\], (\S+), (\S+), (\S+)", m)
                d = int(g.group(1)); o = []
                for h in range(2):
                    dd = d + 4 * ((2 * k + h) % 4)
                    o.append(f"v_mfma_f32_16x16x32_bf16 v[{dd}:{dd+3}], {g.group(2)}, {g.group(3)}, v[{dd}:{dd+3}]")
                return o
            m2 = [conv(m, k) for k, m in enumerate(mfmas)]
            mfmas = [x[0] for x in m2]
            fillers = [f[:len(f)//2] + [x[1]] + f[len(f)//2:] for f, x in zip(fillers, m2)]
        if cfg.skip_mfma:
            mfmas = ["s_nop 0" for _ in mfmas]
        seq = []
        for r in pre:
            a(r); seq.append(-1)
        for i in range(min(ahead, n)):
            for r in reads[i]:
                a(r); seq.append(i)
        for h in head:
            a(h)
        for i in range(n):
            later = sum(1 for x in seq if x > i)
            a(f"s_waitcnt lgkmcnt({later})")
            a(mfmas[i])
            if i + ahead < n:
                for r in reads[i + ahead]:
                    a(r); seq.append(i + ahead)
            for f in fillers[i]:
                a(f)

    fcnt = [0]

    def nextf():
        r = F + 4 * (fcnt[0] % NF)
        fcnt[0] += 1
        return r

    def trreads(sl, ks, db, dst):
        off = (sl - 4) * SLOT + ks * 4096
        return [f"ds_read_b64_tr_b16 {vr(dst, 2)}, v{VA + db} offset:{off}",
                f"ds_read_b64_tr_b16 {vr(dst + 2, 2)}, v{VA + db} offset:{off + 1024}"]

    for j in range(8):
        a("s_barrier")
        if j == 0:
            stamp(a, cfg, 1)
            if cfg.stamps: a("s_waitcnt lgkmcnt(0)")
        ws_, xs_ = slot[("w", j)], slot[("x", j)]
        reads, mf = [], []
        for ks in range(4):
            for db in range(4):
                f = nextf()
                r = trreads(ws_, ks, db, f)
                if db == 0:
                    r = [f"ds_read_b128 {vr(XF + 4 * ks, 4)}, v{XA + ks} offset:{(xs_ - 6) * SLOT}"] + r
                reads.append(r)
                c = "0" if (j == 0 and ks == 0) else vr(O + 16 * db, 16)
                mf.append(f"v_mfma_f32_32x32x16_bf16 {vr(O + 16 * db, 16)}, {vr(f, 4)}, {vr(XF + 4 * ks, 4)}, {c}")
        mfma_phase(reads, mf, [[] for _ in mf])
    a("s_nop 7\ns_nop 1")
    for i in range(32):
        a(f"v_cvt_pk_bf16_f32 v{Q + i}, v{O + 2 * i}, v{O + 2 * i + 1}")

    def qk(tile, sb, fillers, head=()):
        sl = slot[("k", tile)]
        reads, mf = [], []
        for kb in range(2):
            for s in range(8):
                f = nextf()
                reads.append([f"ds_read_b128 {vr(f, 4)}, v{KA + s} offset:{sl * SLOT + kb * 8192}"])
                c = "0" if s == 0 else vr(sb + 16 * kb, 16)
                mf.append(f"v_mfma_f32_32x32x16_bf16 {vr(sb + 16 * kb, 16)}, {vr(f, 4)}, {vr(Q + 4 * s, 4)}, {c}")
        mfma_phase(reads, mf, fillers, head=head)

    def maxchain(sb, first):
        ins = []
        for c, (t, base) in enumerate(((T0, sb), (T1, sb + 16))):
            ch = []
            if first or c == 1:
                ch.append(f"v_max3_f32 v{t}, v{base}, v{base + 1}, v{base + 2}")
                rest = list(range(base + 3, base + 16))
            else:
                ch.append(f"v_max3_f32 v{t}, v{base}, v{base + 1}, v{M}")
                rest = list(range(base + 2, base + 16))
            while len(rest) >= 2:
                ch.append(f"v_max3_f32 v{t}, v{t}, v{rest[0]}, v{rest[1]}"); rest = rest[2:]
            ins.append((ch, rest))
        out = []
        for x, y in zip(ins[0][0], ins[1][0]):
            out += [x, y]
        n = min(len(ins[0][0]), len(ins[1][0]))
        out += ins[0][0][n:] + ins[1][0][n:]
        rest = ins[0][1] + ins[1][1]
        if len(rest) == 2:
            out.append(f"v_max3_f32 v{T0}, v{T0}, v{rest[0]}, v{rest[1]}")
            out.append(f"v_max_f32 v{T0}, v{T0}, v{T1}")
        else:
            out.append(f"v_max3_f32 v{T0}, v{T0}, v{T1}, v{rest[0]}")
        return out

    def maxfin(first):
        out = [f"v_mov_b32 v{T1}, v{T0}", "s_nop 1", f"v_permlane32_swap_b32 v{T0}, v{T1}",
               f"v_max_f32 v{M}, v{T0}, v{T1}"]
        if first:
            out += [f"v_mul_f32 v{MC}, s6, v{M}"]
        else:
            out += [f"v_mul_f32 v{T0}, s6, v{M}", f"v_sub_f32 v{T1}, v{MC}, v{T0}", f"v_mov_b32 v{MC}, v{T0}",
                    f"v_exp_f32 v{ALPHA}, v{T1}", "s_nop 0",
                    f"v_mul_f32 v{L0}, v{L0}, v{ALPHA}", f"v_mul_f32 v{L1}, v{L1}, v{ALPHA}"]
        return out

    def softmax2(sb, first, ngap=16):
        gaps = [[] for _ in range(17)]
        for g in range(16):
            e0, e1 = sb + 2 * g, sb + 2 * g + 1
            gaps[g] += [f"v_fma_f32 v{e0}, v{e0}, s6, -v{MC}", f"v_fma_f32 v{e1}, v{e1}, s6, -v{MC}",
                        f"v_exp_f32 v{e0}, v{e0}", f"v_exp_f32 v{e1}, v{e1}"]
            dst = sb + 8 * (g // 4) + (g % 4)
            if first and g == 0:
                post = [f"v_mov_b32 v{L0}, v{e0}", f"v_mov_b32 v{L1}, v{e1}"]
            else:
                post = [f"v_add_f32 v{L0}, v{L0}, v{e0}", f"v_add_f32 v{L1}, v{L1}, v{e1}"]
            post.append(f"v_cvt_pk_bf16_f32 v{dst}, v{e0}, v{e1}")
            gaps[g + 1] = post + gaps[g + 1]
        return gaps

    a("s_barrier")
    stamp(a, cfg, 2)
    if cfg.stamps: a("s_waitcnt lgkmcnt(0)")
    qk(0, S[0], [[] for _ in range(16)])
    a("s_nop 7\ns_nop 3")
    for x in maxchain(S[0], True) + maxfin(True):
        a(x)
    for t in range(16):
        cur, nxt = S[t % 2], S[(t + 1) % 2]
        gaps = softmax2(cur, t == 0)
        if t < 15:
            a("s_barrier")
            qk(t + 1, nxt, gaps[1:], head=gaps[0])
        else:
            for g in gaps:
                for x in g:
                    a(x)
                a("s_nop 0")
        a("s_barrier")
        if t == 15:
            stamp(a, cfg, 3)
            if cfg.stamps: a("s_waitcnt lgkmcnt(0)")
        sl = slot[("v", t)]
        reads, mf = [], []
        for db in range(4):
            for ks in range(4):
                f = nextf()
                reads.append(trreads(sl, ks, db, f))
                c = "0" if (t == 0 and ks == 0) else vr(O + 16 * db, 16)
                mf.append(f"v_mfma_f32_32x32x16_bf16 {vr(O + 16 * db, 16)}, {vr(f, 4)}, {vr(cur + 8 * ks, 4)}, {c}")
        fill = [[] for _ in range(16)]
        head = []
        if t > 0:
            resc = lambda db: [f"v_mul_f32 v{O + 16 * db + i}, v{ALPHA}, v{O + 16 * db + i}" for i in range(16)]
            head = resc(0) + ["s_nop 0"]
            for db in range(1, 4):
                r = resc(db)
                g0 = 4 * (db - 1)
                fill[g0] += r[0:5]; fill[g0 + 1] += r[5:10]; fill[g0 + 2] += r[10:16]
        tail = []
        if t < 15:
            mc = maxchain(nxt, False)
            fill[3] += mc[0:4]; fill[7] += mc[4:8]; fill[11] += mc[8:12]; fill[12] += mc[12:]
            fin = maxfin(False)
            fill[13] += fin[0:4]; fill[14] += fin[4:9]; fill[15] += fin[9:]
        mfma_phase(reads, mf, fill, head=head)
    a(f"""
    v_add_f32 v{L0}, v{L0}, v{L1}
    v_mov_b32 v{L1}, v{L0}
    s_nop 1
    v_permlane32_swap_b32 v{L0}, v{L1}
    v_add_f32 v{L0}, v{L0}, v{L1}
    v_rcp_f32 v{L0}, v{L0}
    s_nop 7
    """)
    for fi in range(8):
        b = O + 8 * fi
        for i in range(8):
            a(f"v_mul_f32 v{b + i}, v{L0}, v{b + i}")
        for i in range(4):
            a(f"v_cvt_pk_bf16_f32 v{b + i}, v{b + 2 * i}, v{b + 2 * i + 1}")
        if fi == 4:
            a(f"v_add_u32 v{OOFF}, 4096, v{OOFF}")
        a(f"buffer_store_dwordx4 {vr(b, 4)}, v{OOFF}, s[28:31], 0 offen offset:{(fi % 4) * 1024} {cfg.ostore}")
    if cfg.stamps:
        stamp(a, cfg, 4)
        a("s_waitcnt vmcnt(0)")
        stamp(a, cfg, 5)
        a("s_cmp_lg_u32 s4, 0\ns_cbranch_scc1 LA_end")
        stamp_out(a, cfg, 6, 0, "A")
    a("LA_end:\ns_endpgm")
    return a.text()


def kernel_b(cfg):
    a = Asm()

    def vr(b, n):
        return f"v[{b}:{b + n - 1}]"
    a("""
    s_cmp_ge_u32 s2, 256
    s_cbranch_scc1 LB_end
    """)
    stamp(a, cfg, 0)
    ACC, OF, F = 16, 48, 176
    a(f"""
    s_load_dwordx4 s[52:55], s[0:1], 32
    s_load_dwordx2 s[58:59], s[0:1], 56
    v_lshrrev_b32 v1, 6, v0
    v_and_b32 v0, 63, v0
    v_readfirstlane_b32 s4, v1
    s_and_b32 s62, s2, 7
    s_lshr_b32 s61, s2, 3
    s_lshr_b32 s63, s61, 3
    s_and_b32 s64, s61, 7
    s_lshl_b32 s65, s63, 1
    s_add_u32 s65, s65, s64
    s_mul_i32 s5, s4, 20480
    v_lshrrev_b32 v1, 3, v0
    v_lshlrev_b32 v1, 10, v1
    v_bfe_u32 v2, v0, 4, 1
    v_lshlrev_b32 v2, 2, v2
    v_and_b32 v3, 7, v0
    v_xor_b32 v2, v2, v3
    v_lshlrev_b32 v2, 4, v2
    v_add_u32 v4, v1, v2
    v_add_u32 v5, 0x1c00, v4
    v_add_u32 v6, 0x3800, v4
    v_add_u32 v7, 0x5400, v4
    v_lshlrev_b32 v8, 4, v0
    v_lshrrev_b32 v12, 5, v0
    v_bfe_u32 v1, v0, 2, 2
    v_lshlrev_b32 v2, 3, v12
    v_add_u32 v2, v2, v1
    v_lshlrev_b32 v2, 7, v2
    v_lshrrev_b32 v1, 1, v1
    v_lshlrev_b32 v1, 6, v1
    v_add_u32 v2, v2, v1
    v_bfe_u32 v1, v0, 4, 1
    v_lshlrev_b32 v1, 5, v1
    v_add_u32 v2, v2, v1
    v_and_b32 v1, 1, v0
    v_lshlrev_b32 v1, 4, v1
    v_add_u32 v2, v2, v1
    v_and_b32 v1, 2, v0
    v_lshlrev_b32 v1, 2, v1
    v_add_u32 v2, v2, v1
    v_add_u32 v10, s5, v2
    v_xor_b32 v11, 64, v10
    s_waitcnt lgkmcnt(0)
    s_lshl_b32 s3, s4, 19
    s_add_u32 s24, s52, s3
    s_addc_u32 s25, s53, 0
    s_mov_b32 s26, 0x80000
    s_mov_b32 s27, 0x20000
    s_lshl_b32 s3, s62, 2
    s_add_u32 s3, s3, s63
    s_lshl_b32 s3, s3, 3
    s_add_u32 s3, s3, s4
    s_lshl_b32 s3, s3, 15
    s_add_u32 s28, s58, s3
    s_addc_u32 s29, s59, 0
    s_mov_b32 s30, 0x8000
    s_mov_b32 s31, 0x20000
    s_mov_b32 s32, s54
    s_mov_b32 s33, s55
    s_mov_b32 s34, 0x100000
    s_mov_b32 s35, 0x20000
    s_lshl_b32 s66, s64, 7
    """)
    vm = []

    def dma(c):
        a(f"s_add_u32 s7, s65, {c}\ns_and_b32 s7, s7, 7\ns_lshl_b32 s7, s7, 16\ns_add_u32 s7, s7, s66")
        for hlf in range(2):
            a(f"s_add_u32 m0, s5, {(c % 2) * 8192 + hlf * 4096}")
            if hlf:
                a("s_add_u32 s7, s7, 0x8000")
            else:
                a("s_nop 0")
            for j in range(4):
                a(f"buffer_load_dwordx4 v{4 + j}, s[24:27], s7 offen offset:{j * 1024} lds")
                vm.append(("w", c))

    def oload(c):
        a(f"s_add_u32 s7, s65, {c}\ns_and_b32 s7, s7, 7\ns_lshl_b32 s7, s7, 12")
        for j in range(4):
            a(f"buffer_load_dwordx4 {vr(OF + 16 * c + 4 * j, 4)}, v8, s[28:31], s7 offen offset:{j * 1024}")
            vm.append(("o", c))
    dma(0); oload(0); dma(1); oload(1); oload(2)
    for c in range(8):
        last = max(i for i, x in enumerate(vm) if x[1] == c)
        a(f"s_waitcnt vmcnt({len(vm) - 1 - last})")
        for ks in range(4):
            for cbk in range(2):
                f = F + 4 * (2 * ks + cbk)
                off = (c % 2) * 8192 + ks * 2048
                a(f"ds_read_b64_tr_b16 {vr(f, 2)}, v{10 + cbk} offset:{off}")
                a(f"ds_read_b64_tr_b16 {vr(f + 2, 2)}, v{10 + cbk} offset:{off + 512}")
                if ks == 1 and cbk == 1:
                    a("s_waitcnt lgkmcnt(4)")
        a("s_waitcnt lgkmcnt(0)")
        if c + 2 < 8:
            dma(c + 2)
        if c + 3 < 8:
            oload(c + 3)
        for ks in range(4):
            for cbk in range(2):
                f = F + 4 * (2 * ks + cbk)
                cc = "0" if (c == 0 and ks == 0) else vr(ACC + 16 * cbk, 16)
                a(f"v_mfma_f32_32x32x16_bf16 {vr(ACC + 16 * cbk, 16)}, {vr(f, 4)}, {vr(OF + 16 * c + 4 * ks, 4)}, {cc}")
    stamp(a, cfg, 1)
    a("v_add_u32 v9, s5, v8\ns_nop 7\ns_nop 3")
    for ch in range(8):
        a(f"ds_write_b128 v9, {vr(ACC + 4 * ch, 4)} offset:{ch * 1024}")
    a("s_waitcnt lgkmcnt(0)\ns_barrier")
    a("s_lshl_b32 s3, s4, 10\nv_add_u32 v9, s3, v8")
    a(f"v_add_u32 v13, {4 * 20480}, v9")
    for w in range(8):
        a(f"ds_read_b128 {vr(OF + 4 * w, 4)}, v{9 if w < 4 else 13} offset:{(w % 4) * 20480}")
    a("""
    s_lshl_b32 s3, s62, 2
    s_add_u32 s3, s3, s63
    s_lshl_b32 s3, s3, 15
    s_add_u32 s3, s3, s66
    s_lshr_b32 s7, s4, 1
    s_lshl_b32 s7, s7, 5
    s_add_u32 s3, s3, s7
    s_and_b32 s7, s4, 1
    s_lshl_b32 s7, s7, 3
    s_add_u32 s3, s3, s7
    v_and_b32 v1, 31, v0
    v_lshlrev_b32 v1, 10, v1
    v_lshlrev_b32 v2, 4, v12
    v_add_u32 v1, v1, v2
    """)
    for w in range(1, 8):
        a(f"s_waitcnt lgkmcnt({7 - w})")
        for i in range(4):
            a(f"v_add_f32 v{OF + i}, v{OF + i}, v{OF + 4 * w + i}")
    a(f"v_cvt_pk_bf16_f32 v{OF}, v{OF}, v{OF + 1}\nv_cvt_pk_bf16_f32 v{OF + 1}, v{OF + 2}, v{OF + 3}")
    a(f"buffer_store_dwordx2 {vr(OF, 2)}, v1, s[32:35], s3 offen")
    if cfg.stamps:
        a("s_waitcnt vmcnt(0)")
        stamp(a, cfg, 2)
        a("s_cmp_lg_u32 s4, 0\ns_cbranch_scc1 LB_end")
        stamp_out(a, cfg, 3, 6, "B")
    a("LB_end:\ns_endpgm")
    return a.text()


def build(cfg):
    ka, kb = NAME + "_kernel", "oproj_kernel"
    s = HEADER
    s += f"; @launch kernel={ka} grid=(256,1,1) block=(512,1,1) lds=163840\n"
    s += f"; @launch kernel={kb} grid=(256,1,1) block=(512,1,1) lds=163840\n"
    s += '.amdgcn_target "amdgcn-amd-amdhsa--gfx950"\n.text\n'
    for name, body in ((ka, kernel_a(cfg)), (kb, kernel_b(cfg))):
        s += f".globl {name}\n.p2align 8\n.type {name},@function\n{name}:\n" + body
    s += '.section .rodata,"a"\n.p2align 6\n' + kd(ka, 256, 256) + ".p2align 6\n" + kd(kb, 256, 256)
    return s


if __name__ == "__main__":
    def mk(name, **kw):
        c = Cfg()
        for k, v in kw.items():
            setattr(c, k, v)
        open(name, "w").write(build(c))
    mk("v1.s")
    mk("v1_st.s", stamps=True)
    mk("v1_def.s", kvflags="")
    mk("v1_wnt.s", wflags="nt")
    mk("v1_plain.s", ostore="")
    mk("p_noresc_tr.s", trace=True, skip_resc=True)
    mk("p_novalu_tr.s", trace=True, skip_valu=True)
    mk("p_halflds_tr.s", trace=True, skip_lds=2)
    mk("p_halflds_noresc_tr.s", trace=True, skip_lds=2, skip_resc=True)
    mk("p_m16_tr.s", trace=True, mfma16=True)
    mk("p_m16_noresc_tr.s", trace=True, mfma16=True, skip_resc=True)
    mk("p_nomfma_tr.s", trace=True, skip_mfma=True)
    mk("v1_tr.s", trace=True)
    mk("v1_nodma_tr.s", trace=True, nodma=True)
    mk("v1_cyc_st.s", stamps=True, stampins="s_memtime")
    mk("v1_nodma_st.s", stamps=True, nodma=True)
    mk("v1_nodma_cyc_st.s", stamps=True, nodma=True, stampins="s_memtime")
    mk("v1_nocpf_st.s", stamps=True, cpf=False)
```

```python
import sys, struct, math
from common import *

STAMPOFF = 0x8000000
SLOT = 16384
MF = "v_mfma_f32_16x16x32_bf16"


def f32bits(x):
    return struct.unpack("<I", struct.pack("<f", x))[0]


CSCALE = f32bits(math.log2(math.e) / math.sqrt(128.0))
THRESH = f32bits(8.0)


def vr(b, n):
    return f"v[{b}:{b + n - 1}]"


class Cfg:
    kvflags = "nt"
    wflags = ""
    xflags = ""
    ostore = "sc1"
    cpf = True
    trace = False
    qkv = {5: 1, 6: 1, 7: 2}
    prekv = 0
    wxahead = 2
    dmax = 4
    dmain = 3
    nodma = False


ALLOW = {"k": [0, 1, 2, 3], "v": [4, 5, 6, 7], "w": [4, 5, 6], "x": [7, 8, 9]}


def schedule(cfg):
    cons = [[("w", t), ("x", t)] for t in range(8)]
    kv = [("k", 0)]
    for t in range(16):
        if t < 15:
            kv.append(("k", t + 1))
        kv.append(("v", t))
    cons += [[t] for t in kv]
    free = list(range(10))
    slot = {}
    q = list(kv)

    def take(t):
        s = [s for s in free if s in ALLOW[t[0]]]
        assert s, ("no slot", t, free)
        free.remove(s[0]); slot[t] = s[0]
        return t

    def nextkv():
        for t in q:
            if any(s in free for s in ALLOW[t[0]] if not (s in reserved)):
                q.remove(t)
                s = [s for s in free if s in ALLOW[t[0]] and s not in reserved][0]
                free.remove(s); slot[t] = s
                return t
        return None
    plan = []
    reserved = {4, 5, 6, 7}
    pre = []
    for _ in range(cfg.prekv):
        pre.append(nextkv())
    for t in range(cfg.wxahead):
        pre += [take(("w", t)), take(("x", t))]
    plan.append(pre)
    prev = []
    nmain = len(kv)
    for n, grp in enumerate(cons):
        assert all(t in slot for t in grp), (n, grp)
        for t in prev:
            free.append(slot[t])
        out = []
        if n < 8:
            t = n + cfg.wxahead
            if t < 8:
                out += [take(("w", t)), take(("x", t))]
            if t >= 7:
                reserved = set()
            for _ in range(cfg.qkv.get(n, 0)):
                x = nextkv()
                assert x
                out.append(x)
        else:
            m = n - 8
            if m == 0:
                left = len(q)
                span = nmain - cfg.dmain
                cnts = [((i + 1) * left + span - 1) // span - (i * left + span - 1) // span for i in range(span)] + [0] * cfg.dmain
                debt = 0
            debt += cnts[m]
            while debt > 0 and q:
                t = q[0]
                if not any(s in free for s in ALLOW[t[0]]):
                    break
                q.pop(0); out.append(take(t)); debt -= 1
        plan.append(out)
        prev = grp
    assert not q, q
    return cons, plan, slot


def trace_begin(a):
    a("s_memrealtime s[72:73]\ns_memtime s[74:75]\ns_waitcnt lgkmcnt(0)\nv_mov_b32 v100, s72\nv_mov_b32 v101, s72\nv_mov_b32 v102, s74")


def trace_out(a, end):
    a(f"""
    s_cmp_lg_u32 s4, 0
    s_cbranch_scc1 {end}
    s_mul_i32 s3, s2, 768
    s_add_u32 s3, s3, {STAMPOFF}
    s_add_u32 s58, s58, s3
    s_addc_u32 s59, s59, 0
    v_lshlrev_b32 v2, 2, v0
    global_store_dword v2, v100, s[58:59]
    global_store_dword v2, v101, s[58:59] offset:256
    global_store_dword v2, v102, s[58:59] offset:512
    """)


def kernel_a(cfg):
    a = Asm()
    cons, plan, slot = schedule(cfg)
    a("""
    s_cmp_ge_u32 s2, 256
    s_cbranch_scc1 LA_end
    s_load_dwordx8 s[48:55], s[0:1], 0
    s_load_dwordx2 s[58:59], s[0:1], 56
    v_lshrrev_b32 v1, 6, v0
    v_and_b32 v0, 63, v0
    v_readfirstlane_b32 s4, v1
    s_and_b32 s60, s2, 7
    s_lshr_b32 s61, s2, 3
    s_and_b32 s62, s61, 7
    s_lshr_b32 s63, s61, 3
    s_lshl_b32 s65, s63, 1
    s_add_u32 s65, s65, s62
    s_lshl_b32 s3, s60, 2
    s_add_u32 s63, s63, s3
    s_cmp_lt_u32 s4, 4
    s_cbranch_scc1 LA_attn
    """)
    a("""
    s_sub_u32 s4, s4, 4
    s_lshl_b32 s5, s4, 12
    v_lshrrev_b32 v1, 4, v0
    v_and_b32 v2, 15, v0
    v_lshlrev_b32 v4, 8, v1
    v_add_u32 v4, s5, v4
    v_lshlrev_b32 v3, 1, v1
    v_xor_b32 v3, v3, v2
    v_lshlrev_b32 v3, 4, v3
    v_lshlrev_b32 v7, 5, v4
    v_add_u32 v16, v7, v3
    v_add_u32 v17, 0x7c00, v16
    v_xor_b32 v18, 0x80, v16
    v_add_u32 v19, 0x17400, v18
    v_add_u32 v18, 0xf800, v18
    v_add_u32 v14, v4, v3
    v_xor_b32 v15, 0x80, v14
    v_lshrrev_b32 v5, 3, v0
    v_and_b32 v6, 7, v0
    v_xor_b32 v6, v6, v1
    v_lshlrev_b32 v6, 4, v6
    v_lshlrev_b32 v5, 10, v5
    s_lshl_b32 s6, s4, 15
    v_add_u32 v5, s6, v5
    v_add_u32 v20, v5, v6
    v_xor_b32 v21, 64, v20
    v_add_u32 v22, 0x3800, v20
    v_add_u32 v23, 0x5400, v21
    v_add_u32 v21, 0x1c00, v21
    v_xor_b32 v3, v1, v2
    s_and_b32 s6, s4, 1
    s_lshl_b32 s6, s6, 3
    v_xor_b32 v3, s6, v3
    v_lshlrev_b32 v3, 4, v3
    v_add_u32 v10, v4, v3
    v_xor_b32 v11, 64, v10
    s_lshl_b32 s64, s63, 8
    s_lshl_b32 s3, s62, 5
    s_add_u32 s3, s3, s63
    s_lshl_b32 s3, s3, 18
    s_lshl_b32 s6, s62, 17
    s_mov_b32 s10, 0x40000
    s_mov_b32 s11, 0x20000
    s_mov_b32 s14, 0x40000
    s_mov_b32 s15, 0x20000
    s_mov_b32 s18, 0x20000
    s_mov_b32 s19, 0x20000
    s_mov_b32 s22, 0x400000
    s_mov_b32 s23, 0x20000
    s_waitcnt lgkmcnt(0)
    s_mov_b32 s20, s54
    s_mov_b32 s21, s55
    s_add_u32 s16, s48, s6
    s_addc_u32 s17, s49, 0
    s_add_u32 s8, s50, s3
    s_addc_u32 s9, s51, 0
    s_add_u32 s12, s52, s3
    s_addc_u32 s13, s53, 0
    """)
    issued = []
    if cfg.trace:
        trace_begin(a)

    def issue(tile):
        kind, t = tile
        issued.append(tile)
        if cfg.nodma and kind in "kv" and t >= 4:
            return
        a(f"s_add_u32 m0, s5, {slot[tile] * SLOT}")
        if kind == "k":
            a(f"s_mov_b32 s7, {t * SLOT}")
            for j in range(4):
                a(f"buffer_load_dwordx4 v{10 + j // 2}, s[8:11], s7 offen offset:{j * 1024} {cfg.kvflags} lds")
        elif kind == "v":
            a(f"s_mov_b32 s7, {t * SLOT}")
            for j in range(4):
                a(f"buffer_load_dwordx4 v{14 + j // 2}, s[12:15], s7 offen offset:{j * 1024} {cfg.kvflags} lds")
        elif kind == "w":
            a(f"s_add_u32 s7, s65, {t}\ns_and_b32 s7, s7, 7\ns_lshl_b32 s7, s7, 19\ns_add_u32 s7, s7, s64")
            for j in range(4):
                a(f"buffer_load_dwordx4 v{16 + j}, s[20:23], s7 offen offset:{j * 1024} {cfg.wflags} lds")
        elif kind == "x":
            a(f"s_add_u32 s7, s65, {t}\ns_and_b32 s7, s7, 7\ns_lshl_b32 s7, s7, 7")
            for j in range(4):
                a(f"buffer_load_dwordx4 v{20 + j}, s[16:19], s7 offen offset:{j * 1024} {cfg.xflags} lds")
    for t in plan[0]:
        issue(t)
    for n, grp in enumerate(cons):
        last = max(issued.index(t) for t in grp)
        cnt = len(issued) - 1 - last
        if plan[n + 1] and n >= 8:
            cnt = min(cnt, max(0, cfg.dmax - len(plan[n + 1])))
        a(f"s_waitcnt vmcnt({min(63, cnt * 4)})")
        if cfg.trace:
            a("s_memrealtime s[70:71]")
        a("s_barrier")
        if cfg.trace:
            a("s_memrealtime s[72:73]\ns_memtime s[74:75]")
        for t in plan[n + 1]:
            issue(t)
        if cfg.trace:
            a(f"s_waitcnt lgkmcnt(0)\nv_writelane_b32 v100, s70, {n + 1}\nv_writelane_b32 v101, s72, {n + 1}\nv_writelane_b32 v102, s74, {n + 1}")
    if cfg.trace:
        for n in (41, 42):
            a("s_barrier\ns_memrealtime s[72:73]\ns_memtime s[74:75]")
            a(f"s_waitcnt lgkmcnt(0)\nv_writelane_b32 v100, s72, {n}\nv_writelane_b32 v101, s72, {n}\nv_writelane_b32 v102, s74, {n}")
        trace_out(a, "LA_end")
    a("s_endpgm")

    KA, VA, XA = 2, 6, 14
    T0, T1, T2, T3, OOFF = 16, 17, 18, 19, 20
    ONES, NM, L, Q, O = 24, 28, 36, 44, 76
    S = [140, 172]
    F, NF, XF = 204, 8, 236
    a("LA_attn:")
    if cfg.cpf:
        a(f"""
        s_getpc_b64 s[40:41]
        LA_pc:
        s_sub_u32 s40, s40, LA_pc-{NAME}_kernel
        s_subb_u32 s41, s41, 0
        s_lshl_b32 s3, s61, 2
        s_add_u32 s3, s3, s4
        s_lshl_b32 s3, s3, 9
        v_and_b32 v1, 3, v0
        v_lshlrev_b32 v1, 7, v1
        v_add_u32 v1, s3, v1
        v_min_u32 v1, LA_end-{NAME}_kernel, v1
        global_load_dword v23, v1, s[40:41]
        """)
    a(f"""
    v_and_b32 v1, 15, v0
    v_lshrrev_b32 v22, 4, v0
    v_and_b32 v{T0}, 12, v1
    v_lshlrev_b32 v{T0}, 1, v{T0}
    v_and_b32 v{T1}, 3, v1
    v_or_b32 v{T0}, v{T0}, v{T1}
    v_lshlrev_b32 v{T0}, 8, v{T0}
    v_and_b32 v{T1}, 1, v22
    v_lshlrev_b32 v{T1}, 1, v{T1}
    v_lshrrev_b32 v{T2}, 1, v22
    v_or_b32 v{T1}, v{T1}, v{T2}
    v_xor_b32 v{T1}, v{T1}, v1
    v_lshlrev_b32 v{T1}, 4, v{T1}
    v_add_u32 v{KA}, v{T0}, v{T1}
    v_xor_b32 v{KA + 1}, 64, v{KA}
    v_xor_b32 v{KA + 2}, 0x80, v{KA}
    v_xor_b32 v{KA + 3}, 0xc0, v{KA}
    v_lshrrev_b32 v{T0}, 2, v1
    v_lshlrev_b32 v{T1}, 3, v22
    v_add_u32 v{T1}, v{T1}, v{T0}
    v_lshlrev_b32 v{T1}, 8, v{T1}
    v_and_b32 v{T2}, 1, v22
    v_lshlrev_b32 v{T2}, 2, v{T2}
    v_or_b32 v{T0}, v{T0}, v{T2}
    v_lshlrev_b32 v{T0}, 5, v{T0}
    v_add_u32 v{T1}, v{T1}, v{T0}
    v_and_b32 v{T0}, 3, v0
    v_lshlrev_b32 v{T0}, 3, v{T0}
    v_add_u32 v{T1}, v{T1}, v{T0}
    v_add_u32 v{VA}, {4 * SLOT}, v{T1}
    """)
    for db in range(1, 8):
        a(f"v_xor_b32 v{VA + db}, {db * 32}, v{VA}")
    a(f"""
    v_lshrrev_b32 v{T0}, 1, v1
    v_xor_b32 v{T0}, v{T0}, v22
    v_lshlrev_b32 v{T0}, 4, v{T0}
    v_lshlrev_b32 v{T1}, 7, v1
    v_add_u32 v{T0}, v{T0}, v{T1}
    s_lshl_b32 s5, s4, 12
    s_add_u32 s5, s5, {6 * SLOT}
    v_add_u32 v{XA}, s5, v{T0}
    v_xor_b32 v{XA + 1}, 64, v{XA}
    v_lshlrev_b32 v{OOFF}, 4, v0
    s_mov_b32 s6, {CSCALE}
    s_mov_b32 s7, {CSCALE}
    s_mov_b32 s36, {THRESH}
    """)
    for i in range(4):
        a(f"v_mov_b32 v{ONES + i}, 0x3f803f80")
    a(f"""
    s_lshl_b32 s3, s62, 2
    s_add_u32 s3, s3, s4
    s_lshl_b32 s3, s3, 5
    s_add_u32 s3, s3, s63
    s_lshl_b32 s3, s3, 13
    s_mov_b32 s30, 0x2000
    s_mov_b32 s31, 0x20000
    s_waitcnt lgkmcnt(0)
    s_add_u32 s28, s58, s3
    s_addc_u32 s29, s59, 0
    """)

    def blk(base, u, qb, e):
        return base + ((u * 2 + qb) * 2 + e) * 4

    def mfma_phase(reads, mfmas, fillers, head=(), ahead=4):
        n = len(mfmas)
        seq = []
        for i in range(min(ahead, n)):
            for r in reads[i]:
                a(r); seq.append(i)
        for h in head:
            a(h)
        for i in range(n):
            if i % 2 == 0:
                later = sum(1 for x in seq if x > i + 1)
                a(f"s_waitcnt lgkmcnt({later})")
            rd = reads[i + ahead] if i + ahead < n else []
            seq += [i + ahead] * len(rd)
            h = (len(rd) + 1) // 2
            a(mfmas[i][0])
            for x in rd[:h] + list(fillers[i][0]):
                a(x)
            a(mfmas[i][1])
            for x in rd[h:] + list(fillers[i][1]):
                a(x)

    fcnt = [0]

    def nextf():
        r = F + 4 * (fcnt[0] % NF)
        fcnt[0] += 1
        return r

    def trreads(sl, ks, db, dst):
        off = (sl - 4) * SLOT + ks * 8192
        return [f"ds_read_b64_tr_b16 {vr(dst, 2)}, v{VA + db} offset:{off}",
                f"ds_read_b64_tr_b16 {vr(dst + 2, 2)}, v{VA + db} offset:{off + 1024}"]

    nofill = lambda n: [[[], []] for _ in range(n)]

    for j in range(8):
        a("s_barrier")
        ws_, xs_ = slot[("w", j)], slot[("x", j)]
        reads, mf = [], []
        for ks in range(2):
            for db in range(8):
                f = nextf()
                r = trreads(ws_, ks, db, f)
                if db == 0:
                    r = [f"ds_read_b128 {vr(XF + 8 * ks + 4 * qb, 4)}, v{XA + ks} offset:{(xs_ - 6) * SLOT + qb * 2048}" for qb in range(2)] + r
                reads.append(r)
                m = []
                for qb in range(2):
                    d = vr(blk(O, db // 2, qb, db % 2), 4)
                    c = "0" if (j == 0 and ks == 0) else d
                    m.append(f"{MF} {d}, {vr(f, 4)}, {vr(XF + 8 * ks + 4 * qb, 4)}, {c}")
                mf.append(m)
        mfma_phase(reads, mf, nofill(16))
    a("s_nop 3")
    for fr in range(8):
        for i in range(4):
            r = O + 8 * fr + 2 * i
            a(f"v_pk_mul_f32 {vr(r, 2)}, {vr(r, 2)}, s[6:7]")
        for i in range(4):
            r = O + 8 * fr + 2 * i
            a(f"v_cvt_pk_bf16_f32 v{Q + 4 * fr + i}, v{r}, v{r + 1}")
        if fr > 0:
            p = Q + 4 * (fr - 1)
            a(f"v_permlane16_swap_b32 v{p}, v{p + 2}\nv_permlane16_swap_b32 v{p + 1}, v{p + 3}")
    p = Q + 28
    a(f"s_nop 1\nv_permlane16_swap_b32 v{p}, v{p + 2}\nv_permlane16_swap_b32 v{p + 1}, v{p + 3}")

    def qk(tile, sb, fillers, head=(), first=False):
        sl = slot[("k", tile)]
        reads, mf = [], []
        for ks in range(2):
            for e in range(2):
                for s in range(4):
                    f = nextf()
                    reads.append([f"ds_read_b128 {vr(f, 4)}, v{KA + s} offset:{sl * SLOT + ks * 8192 + e * 1024}"])
                    m = []
                    for qb in range(2):
                        d = vr(blk(sb, ks, qb, e), 4)
                        c = d if s > 0 else ("0" if first else vr(NM + 4 * qb, 4))
                        m.append(f"{MF} {d}, {vr(f, 4)}, {vr(Q + 4 * (2 * s + qb), 4)}, {c}")
                    mf.append(m)
        mfma_phase(reads, mf, fillers, head=head)

    def maxchain(sb):
        out = [[], []]
        for qb, t in ((0, T0), (1, T1)):
            regs = [blk(sb, ks, qb, 0) + i for ks in range(2) for i in range(8)]
            out[qb].append(f"v_max3_f32 v{t}, v{regs[0]}, v{regs[1]}, v{regs[2]}")
            for i in range(3, 15, 2):
                out[qb].append(f"v_max3_f32 v{t}, v{t}, v{regs[i]}, v{regs[i + 1]}")
            out[qb].append(f"v_max_f32 v{t}, v{t}, v{regs[15]}")
        return [x for p in zip(*out) for x in p]

    def rescale(sb, first):
        a(f"""
        v_mov_b32 v{T2}, v{T0}
        v_mov_b32 v{T3}, v{T1}
        s_nop 1
        v_permlane32_swap_b32 v{T0}, v{T2}
        v_permlane32_swap_b32 v{T1}, v{T3}
        v_max_f32 v{T0}, v{T0}, v{T2}
        v_max_f32 v{T1}, v{T1}, v{T3}
        v_mov_b32 v{T2}, v{T0}
        v_mov_b32 v{T3}, v{T1}
        s_nop 1
        v_permlane16_swap_b32 v{T0}, v{T2}
        v_permlane16_swap_b32 v{T1}, v{T3}
        """)
        if first:
            a(f"v_max_f32 v{T0}, v{T0}, v{T2}\nv_max_f32 v{T1}, v{T1}, v{T3}")
        else:
            a(f"v_max3_f32 v{T0}, v{T0}, v{T2}, 0\nv_max3_f32 v{T1}, v{T1}, v{T3}, 0")
            a(f"v_exp_f32 v{T2}, -v{T0}\nv_exp_f32 v{T3}, -v{T1}")
        for qb, t in ((0, T0), (1, T1)):
            for i in range(4):
                if first:
                    a(f"v_sub_f32 v{NM + 4 * qb + i}, 0, v{t}")
                else:
                    a(f"v_sub_f32 v{NM + 4 * qb + i}, v{NM + 4 * qb + i}, v{t}")
        for ks in range(2):
            for qb, t in ((0, T0), (1, T1)):
                for i in range(8):
                    r = blk(sb, ks, qb, 0) + i
                    a(f"v_sub_f32 v{r}, v{r}, v{t}")
        if not first:
            for qb, t in ((0, T2), (1, T3)):
                for i in range(4):
                    a(f"v_mul_f32 v{L + 4 * qb + i}, v{t}, v{L + 4 * qb + i}")
                for u in range(4):
                    for i in range(8):
                        r = blk(O, u, qb, 0) + i
                        a(f"v_mul_f32 v{r}, v{t}, v{r}")

    def softmax2(sb):
        ex = [f"v_exp_f32 v{sb + i}, v{sb + i}" for i in range(32)]
        cv = [f"v_cvt_pk_bf16_f32 v{sb + 8 * (g // 4) + g % 4}, v{sb + 2 * g}, v{sb + 2 * g + 1}" for g in range(16)]
        NH = 4
        head = ex[:2 * NH]
        fill = nofill(16)
        for i in range(16 - NH):
            fill[i][0].append(ex[2 * (NH + i)])
            fill[i][1].append(ex[2 * (NH + i) + 1])
        for g in range(16):
            fill[g][1].append(cv[g])
        return head, fill, ex, cv

    a("s_barrier")
    qk(0, S[0], nofill(16), first=True)
    a("s_nop 7")
    for x in maxchain(S[0]):
        a(x)
    rescale(S[0], True)
    for t in range(16):
        cur, nxt = S[t % 2], S[(t + 1) % 2]
        head, fill, ex, cv = softmax2(cur)
        if t < 15:
            a("s_barrier")
            qk(t + 1, nxt, fill, head=head)
        else:
            for x in ex + cv:
                a(x)
        ones = []
        for ks in range(2):
            for qb in range(2):
                d = vr(L + 4 * qb, 4)
                c = "0" if (t == 0 and ks == 0) else d
                ones.append(f"{MF} {d}, {vr(ONES, 4)}, {vr(blk(cur, ks, qb, 0), 4)}, {c}")
        if t == 15:
            a("s_nop 1")
            for x in ones:
                a(x)
            a(f"s_nop 7\nv_rcp_f32 v{T0}, v{L}\nv_rcp_f32 v{T1}, v{L + 4}")
            ones = []
        a("s_barrier")
        sl = slot[("v", t)]
        reads, mf = [], []
        for db in range(8):
            for ks in range(2):
                f = nextf()
                reads.append(trreads(sl, ks, db, f))
                m = []
                for qb in range(2):
                    d = vr(blk(O, db // 2, qb, db % 2), 4)
                    c = "0" if (t == 0 and ks == 0) else d
                    m.append(f"{MF} {d}, {vr(f, 4)}, {vr(blk(cur, ks, qb, 0), 4)}, {c}")
                mf.append(m)
        fill = nofill(16)
        tail = []
        if t < 15:
            mc = maxchain(nxt) + [f"v_max_f32 v{T2}, v{T0}, v{T1}", f"v_cmp_lt_f32 vcc, s36, v{T2}"]
            pos = list(range(12)) + [12, 12, 13, 13, 14, 14]
            for k, x in enumerate(mc):
                fill[pos[k]][k % 2].append(x)
        else:
            def fin(u, qb):
                b = blk(O, u, qb, 0)
                o = [f"v_mul_f32 v{b + i}, v{(T0, T1)[qb]}, v{b + i}" for i in range(8)]
                o += [f"v_cvt_pk_bf16_f32 v{b + i}, v{b + 2 * i}, v{b + 2 * i + 1}" for i in range(4)]
                fi = 2 * u + qb
                if fi == 4:
                    o.append(f"v_add_u32 v{OOFF}, 4096, v{OOFF}")
                o.append(f"buffer_store_dwordx4 {vr(b, 4)}, v{OOFF}, s[28:31], 0 offen offset:{(fi % 4) * 1024} {cfg.ostore}")
                return o
            pend = []
            for u in range(4):
                pend.append(fin(u, 0) + fin(u, 1))
            for u in range(3):
                ins = pend[u]
                gaps = [(s, h) for s in range(4 * u + 6, min(16, 4 * u + 10)) for h in range(2)]
                per = -(-len(ins) // 8)
                for k, (s, h) in enumerate(gaps):
                    fill[s][h] += ins[k * per:(k + 1) * per]
                tail += ins[len(gaps) * per:]
            tail += pend[3]
        mfma_phase(reads, mf, fill, head=ones)
        for x in tail:
            a(x)
        if t < 15:
            a(f"s_cbranch_vccnz LA_rare{t}\nLA_back{t}:")
    if cfg.trace:
        a("s_barrier\ns_waitcnt vmcnt(0)\ns_barrier")
    a("s_endpgm")
    for t in range(15):
        a(f"LA_rare{t}:\ns_call_b64 s[38:39], LA_resc{(t + 1) % 2}\ns_branch LA_back{t}")
    for b in range(2):
        a(f"LA_resc{b}:")
        rescale(S[b], False)
        a("s_nop 1\ns_setpc_b64 s[38:39]")
    a("LA_end:\ns_endpgm")
    return a.text()


def kernel_b(cfg):
    a = Asm()
    ACC, OF, F = 16, 48, 176
    a(f"""
    s_cmp_ge_u32 s2, 256
    s_cbranch_scc1 LB_end
    s_load_dwordx4 s[52:55], s[0:1], 32
    s_load_dwordx2 s[58:59], s[0:1], 56
    v_lshrrev_b32 v1, 6, v0
    v_and_b32 v0, 63, v0
    v_readfirstlane_b32 s4, v1
    s_and_b32 s62, s2, 7
    s_lshr_b32 s61, s2, 3
    s_lshr_b32 s63, s61, 3
    s_and_b32 s64, s61, 7
    s_lshl_b32 s65, s63, 1
    s_add_u32 s65, s65, s64
    s_mul_i32 s5, s4, 20480
    v_lshrrev_b32 v1, 3, v0
    v_lshlrev_b32 v1, 10, v1
    v_lshrrev_b32 v14, 4, v0
    v_lshlrev_b32 v2, 1, v14
    v_and_b32 v3, 7, v0
    v_xor_b32 v2, v2, v3
    v_lshlrev_b32 v2, 4, v2
    v_add_u32 v4, v1, v2
    v_add_u32 v5, 0x1c00, v4
    v_add_u32 v6, 0x3800, v4
    v_add_u32 v7, 0x5400, v4
    v_lshlrev_b32 v8, 4, v0
    v_lshrrev_b32 v1, 2, v0
    v_lshlrev_b32 v2, 7, v1
    v_bfe_u32 v1, v0, 3, 2
    v_lshlrev_b32 v1, 5, v1
    v_add_u32 v2, v2, v1
    v_and_b32 v1, 3, v0
    v_lshlrev_b32 v1, 3, v1
    v_add_u32 v2, v2, v1
    v_add_u32 v10, s5, v2
    v_xor_b32 v11, 32, v10
    v_xor_b32 v12, 64, v10
    v_xor_b32 v13, 0x60, v10
    s_waitcnt lgkmcnt(0)
    s_lshl_b32 s3, s4, 19
    s_add_u32 s24, s52, s3
    s_addc_u32 s25, s53, 0
    s_mov_b32 s26, 0x80000
    s_mov_b32 s27, 0x20000
    s_lshl_b32 s3, s62, 2
    s_add_u32 s3, s3, s63
    s_lshl_b32 s3, s3, 3
    s_add_u32 s3, s3, s4
    s_lshl_b32 s3, s3, 15
    s_add_u32 s28, s58, s3
    s_addc_u32 s29, s59, 0
    s_mov_b32 s30, 0x8000
    s_mov_b32 s31, 0x20000
    s_mov_b32 s32, s54
    s_mov_b32 s33, s55
    s_mov_b32 s34, 0x100000
    s_mov_b32 s35, 0x20000
    s_lshl_b32 s66, s64, 7
    """)
    vm = []

    def dma(c):
        a(f"s_add_u32 s7, s65, {c}\ns_and_b32 s7, s7, 7\ns_lshl_b32 s7, s7, 16\ns_add_u32 s7, s7, s66")
        for hlf in range(2):
            a(f"s_add_u32 m0, s5, {(c % 2) * 8192 + hlf * 4096}")
            if hlf:
                a("s_add_u32 s7, s7, 0x8000")
            else:
                a("s_nop 0")
            for j in range(4):
                a(f"buffer_load_dwordx4 v{4 + j}, s[24:27], s7 offen offset:{j * 1024} lds")
                vm.append(("w", c))

    def oload(c):
        a(f"s_add_u32 s7, s65, {c}\ns_and_b32 s7, s7, 7\ns_lshl_b32 s7, s7, 12")
        for j in range(4):
            a(f"buffer_load_dwordx4 {vr(OF + 16 * c + 4 * j, 4)}, v8, s[28:31], s7 offen offset:{j * 1024}")
            vm.append(("o", c))
    dma(0); oload(0); dma(1); oload(1); oload(2)
    for c in range(8):
        last = max(i for i, x in enumerate(vm) if x[1] == c)
        a(f"s_waitcnt vmcnt({len(vm) - 1 - last})")
        for u in range(2):
            for nb in range(4):
                f = F + 4 * (4 * u + nb)
                off = (c % 2) * 8192 + u * 4096
                a(f"ds_read_b64_tr_b16 {vr(f, 2)}, v{10 + nb} offset:{off}")
                a(f"ds_read_b64_tr_b16 {vr(f + 2, 2)}, v{10 + nb} offset:{off + 2048}")
            if u == 0:
                a("s_waitcnt lgkmcnt(4)")
        a("s_waitcnt lgkmcnt(0)")
        if c + 2 < 8:
            dma(c + 2)
        if c + 3 < 8:
            oload(c + 3)
        for u in range(2):
            for nb in range(4):
                f = F + 4 * (4 * u + nb)
                for qb in range(2):
                    d = vr(ACC + 4 * (2 * nb + qb), 4)
                    cc = "0" if (c == 0 and u == 0) else d
                    a(f"{MF} {d}, {vr(f, 4)}, {vr(OF + 16 * c + 4 * (2 * u + qb), 4)}, {cc}")
    a("v_add_u32 v9, s5, v8\ns_nop 7")
    for ch in range(8):
        a(f"ds_write_b128 v9, {vr(ACC + 4 * ch, 4)} offset:{ch * 1024}")
    a("s_waitcnt lgkmcnt(0)\ns_barrier")
    a("s_lshl_b32 s3, s4, 10\nv_add_u32 v9, s3, v8")
    a(f"v_add_u32 v15, {4 * 20480}, v9")
    for w in range(8):
        a(f"ds_read_b128 {vr(OF + 4 * w, 4)}, v{9 if w < 4 else 15} offset:{(w % 4) * 20480}")
    a("""
    s_lshl_b32 s3, s62, 2
    s_add_u32 s3, s3, s63
    s_lshl_b32 s3, s3, 15
    s_add_u32 s3, s3, s66
    s_lshr_b32 s7, s4, 1
    s_lshl_b32 s7, s7, 5
    s_add_u32 s3, s3, s7
    s_and_b32 s7, s4, 1
    s_lshl_b32 s7, s7, 14
    s_add_u32 s3, s3, s7
    v_and_b32 v1, 15, v0
    v_lshlrev_b32 v1, 10, v1
    v_lshlrev_b32 v2, 3, v14
    v_add_u32 v1, v1, v2
    """)
    for w in range(1, 8):
        a(f"s_waitcnt lgkmcnt({7 - w})")
        for i in range(4):
            a(f"v_add_f32 v{OF + i}, v{OF + i}, v{OF + 4 * w + i}")
    a(f"v_cvt_pk_bf16_f32 v{OF}, v{OF}, v{OF + 1}\nv_cvt_pk_bf16_f32 v{OF + 1}, v{OF + 2}, v{OF + 3}")
    a(f"buffer_store_dwordx2 {vr(OF, 2)}, v1, s[32:35], s3 offen")
    a("LB_end:\ns_endpgm")
    return a.text()


def build(cfg):
    ka, kb = NAME + "_kernel", "oproj_kernel"
    s = HEADER
    s += f"; @launch kernel={ka} grid=(256,1,1) block=(512,1,1) lds=163840\n"
    s += f"; @launch kernel={kb} grid=(256,1,1) block=(512,1,1) lds=163840\n"
    s += '.amdgcn_target "amdgcn-amd-amdhsa--gfx950"\n.text\n'
    for name, body in ((ka, kernel_a(cfg)), (kb, kernel_b(cfg))):
        s += f".globl {name}\n.p2align 8\n.type {name},@function\n{name}:\n" + body
    s += '.section .rodata,"a"\n.p2align 6\n' + kd(ka, 256, 256) + ".p2align 6\n" + kd(kb, 256, 256)
    return s


def mk(name, **kw):
    c = Cfg()
    for k, v in kw.items():
        assert hasattr(c, k), k
        setattr(c, k, v)
    open(name, "w").write(build(c))
    return name


if __name__ == "__main__":
    L = []
    V = {
        "a": dict(),
        "b": dict(qkv={6: 2, 7: 2}),
        "c": dict(qkv={1: 1, 3: 1, 5: 1, 6: 1, 7: 2}),
        "d": dict(qkv={0: 1, 2: 1, 4: 1, 5: 1, 6: 1, 7: 2}),
        "e": dict(qkv={6: 1, 7: 2}, dmain=2, dmax=3),
        "n": dict(nodma=True),
    }
    for k, v in V.items():
        mk(f"v2{k}.s", **v)
        L.append(mk(f"v2{k}_tr.s", trace=True, **v))
    mk("v2a_def.s", kvflags="")
    mk("v2a_wnt.s", wflags="nt")
    mk("v2a_def_tr.s", kvflags="", trace=True)
    mk("v2a_wnt_tr.s", wflags="nt", trace=True)
    print(" ".join(L))
    if len(sys.argv) > 1:
        for k, v in V.items():
            c = Cfg()
            for kk, vv in v.items():
                setattr(c, kk, vv)
            cons, plan, slot = schedule(c)
            print(k, " | ".join(",".join(f"{t[0]}{t[1]}@{slot[t]}" for t in p) for p in plan))
```

```python
import sys, struct, math
from common import NAME, HEADER, kd

SLOT = 16384
MF = "v_mfma_f32_16x16x32_bf16"
SPIN = 1 << 21
FLAGOFF, PARTOFF = 0x1000000, 0x2000000
FL, QL = 256, 16
FSTR = 4 * QL * FL


class Cfg:
    qplan = [["pp", "pkkkkl", "p", "p", "p", "p", "p"], ["pp", "p", "p", "pk", "p", "pkkkl", "p"]]
    cin = 5
    first = (4, 4, 4, 3)
    slope = 0.0
    lend = 8
    mfree = 26
    wostart, woend = 6, 8
    wopf = (0, 1, 2, 3)
    tm = (4, 2, 8, 1)
    clr, chk = (0, 4), (16, 22)
    pub, nup = 11, 8
    omask = 3
    cpat = (0,)
    ospan = 26


def tileoff(cfg, t):
    x = 0
    for k, m in enumerate(cfg.tm):
        x ^= m * ((t >> k) & 1)
    return x * SLOT


def f32bits(x):
    return struct.unpack("<I", struct.pack("<f", x))[0]


CSCALE = f32bits(math.log2(math.e) / math.sqrt(128.0))
THRESH = f32bits(2.0 ** 18)


def vr(b, n):
    return f"v[{b}:{b + n - 1}]"


def lines(txt):
    return [x.strip() for x in txt.split("\n") if x.strip()]


class Asm:
    def __init__(self):
        self.l = []

    def __call__(self, s):
        for x in lines(s):
            self.l.append(("" if x.endswith(":") else "    ") + x)

    def text(self):
        return "\n".join(self.l) + "\n"


def schedule(cfg):
    cons = [[("w", t), ("x", t)] for t in range(8)]
    kv = [("k", 0)]
    for t in range(16):
        if t < 15:
            kv.append(("k", t + 1))
        kv.append(("v", t))
    cons += [[t] for t in kv]
    slot = {}
    for t in range(8):
        slot[("w", t)] = 4 + t % 3
        slot[("x", t)] = 7 + t % 3
    for t in range(4):
        slot[("k", t)] = t
    qvars = []
    for var in cfg.qplan:
        nx, busy, plan = {"p": 0, "k": 0, "l": 0}, {}, []
        for n, txt in enumerate(var, -1):
            if n >= 1:
                for t in cons[n - 1]:
                    del busy[slot[t]]
            out = []
            for c in txt:
                if c == "l":
                    out += [(("v", nx[c]), j, "l") for j in range(4)]
                    nx[c] += 1
                    continue
                tiles = [("w", nx[c]), ("x", nx[c])] if c == "p" else [(c, nx[c])]
                nx[c] += 1
                for t in tiles:
                    assert slot[t] not in busy
                    busy[slot[t]] = t
                    out += [(t, j, "d") for j in range(4)]
            plan.append(out)
            assert all(busy.get(slot[t]) == t for t in cons[n + 1])
        assert nx["p"] == 8
        qvars.append(plan)
    flat = [sorted(x for p in v for x in p) for v in qvars]
    assert all(f == flat[0] for f in flat)
    done = {x[0] for x in flat[0] if x[2] == "d"}
    touched = {x[:2]: 0 for x in flat[0] if x[2] == "l"}
    for t in range(4):
        if ("k", t) not in done:
            del slot[("k", t)]
    q = [(t, j) for t in kv if t not in done for j in range(4)]
    free = [s for s in range(10) if s not in busy]
    issued = nt = 128 - len(q) + len(touched)
    nf = len(cfg.first)
    rate = (4 * 30 + cfg.cin - issued - sum(cfg.first)) / (31 - nf)

    def tgt(m):
        k, n_ = max(0, m + 3 - nf), 31 - nf
        c = issued + sum(cfg.first[:m + 3]) + rate * k - cfg.slope * k * (n_ - k) / n_
        return min(128, max(int(c + 0.5), 4 * (m + 2) + cfg.cin))
    woq = [(("o", p), j) for p in range(8) for j in range(4)]
    low = (0, 1, 2, 3, 4, 5)
    want = {0: (8,), 1: (9,), 2: (7, 6), 3: (7, 6), 4: low, 5: low, 6: low, 7: low}
    main = []
    for m in range(-2, 32):
        for t in cons[8 + m - 1]:
            free.append(slot[t])
        target = 128 if m >= cfg.mfree else tgt(m)
        span = max(-(-tgt(mm) // 4) - mm for mm in range(m, m + 3))
        keep = max(2, (span + 1) // 2)
        allow = {"k": [2, 3, 1, 0][:keep], "v": [5, 4, 6, 7][:keep]}
        need = kv[m + 1] if -1 <= m < 31 else None
        out = []

        def alloc(t):
            if t not in slot:
                if any(x[0] not in slot for x in q[:[y[0] for y in q].index(t)]):
                    return False
                c = [s for s in ((5, 4, 3, 2, 1, 0) if t == ("v", 15) else allow[t[0]]) if s in free]
                if not c:
                    return False
                slot[t] = c[0]
                free.remove(c[0])
            return True
        for x in q:
            if x in touched:
                alloc(x[0])
        for x in list(q):
            if x in touched:
                continue
            if nt >= target and not any(y[0] == need and y not in touched for y in q):
                break
            if alloc(x[0]):
                q.remove(x)
                out.append(x + ("d",))
            elif m < cfg.lend:
                touched[x] = nt
                out.append(x + ("l",))
            else:
                break
            nt += 1
        for x in list(q):
            if x in touched and x[0] in slot and (x[0] == need or nt - touched[x] > cfg.cin):
                q.remove(x)
                out.append(x + ("h",))
        assert not any(x[0] == need for x in q)
        wocred = 1 if m >= cfg.wostart else 0
        for x in list(woq):
            if q and wocred < 1:
                break
            if not q and m < 31 and len(out) >= cfg.woend:
                break
            t = x[0]
            if t not in slot:
                c = [s for s in want[t[1]] if s in free and (not q or (s not in allow["k"] and s not in allow["v"]))]
                if not c:
                    continue
                slot[t] = c[0]
                free.remove(c[0])
            woq.remove(x)
            out.append(x + ("d",))
            wocred -= 1
        main.append(out)
    assert not q and not woq
    return cons, qvars, main, slot


def dma_waves(a, cfg, cons, qvars, main, slot):
    KG, VG, WG, XG, OG = 16, 18, 20, 24, 28
    a(f"""
    s_sub_u32 s4, s4, 4
    s_lshl_b32 s5, s4, 12
    v_lshrrev_b32 v1, 4, v0
    v_and_b32 v2, 15, v0
    v_lshlrev_b32 v4, 8, v1
    v_add_u32 v4, s5, v4
    v_lshlrev_b32 v3, 1, v1
    v_xor_b32 v3, v3, v2
    v_lshlrev_b32 v3, 4, v3
    v_lshlrev_b32 v7, 5, v4
    v_add_u32 v{WG}, v7, v3
    v_add_u32 v{WG + 1}, 0x7c00, v{WG}
    v_xor_b32 v{WG + 2}, 0x80, v{WG}
    v_add_u32 v{WG + 3}, 0x17400, v{WG + 2}
    v_add_u32 v{WG + 2}, 0xf800, v{WG + 2}
    v_add_u32 v{VG}, v4, v3
    v_xor_b32 v{VG + 1}, 0x80, v{VG}
    v_lshrrev_b32 v5, 3, v0
    v_and_b32 v6, 7, v0
    v_xor_b32 v6, v6, v1
    v_lshlrev_b32 v6, 4, v6
    v_lshlrev_b32 v5, 10, v5
    s_lshl_b32 s6, s4, 15
    v_add_u32 v5, s6, v5
    v_add_u32 v{XG}, v5, v6
    v_xor_b32 v{XG + 1}, 64, v{XG}
    v_add_u32 v{XG + 2}, 0x3800, v{XG}
    v_add_u32 v{XG + 3}, 0x5400, v{XG + 1}
    v_add_u32 v{XG + 1}, 0x1c00, v{XG + 1}
    s_lshl_b32 s64, s63, 8
    s_lshl_b32 s6, s62, 17
    s_mov_b32 s18, 0x20000
    s_mov_b32 s19, 0x20000
    s_mov_b32 s22, 0x400000
    s_mov_b32 s23, 0x20000
    s_waitcnt lgkmcnt(0)
    s_mov_b32 s20, s54
    s_mov_b32 s21, s55
    s_add_u32 s16, s48, s6
    s_addc_u32 s17, s49, 0
    """)
    setup2 = f"""
    v_xor_b32 v3, v1, v2
    s_and_b32 s6, s4, 1
    s_lshl_b32 s6, s6, 3
    v_xor_b32 v3, s6, v3
    v_lshlrev_b32 v3, 4, v3
    v_add_u32 v{KG}, v4, v3
    v_xor_b32 v{KG + 1}, 64, v{KG}
    s_lshl_b32 s3, s62, 5
    s_add_u32 s3, s3, s63
    s_lshl_b32 s3, s3, 18
    s_add_u32 s8, s50, s3
    s_addc_u32 s9, s51, 0
    s_mov_b32 s10, 0x40000
    s_mov_b32 s11, 0x20000
    s_add_u32 s12, s52, s3
    s_addc_u32 s13, s53, 0
    s_mov_b32 s14, 0x40000
    s_mov_b32 s15, 0x20000
    s_lshr_b32 s3, s4, 1
    s_lshl_b32 s3, s3, 15
    s_and_b32 s6, s4, 1
    s_lshl_b32 s6, s6, 13
    s_add_u32 s3, s3, s6
    v_lshlrev_b32 v4, 10, v1
    v_add_u32 v4, s3, v4
    v_lshlrev_b32 v3, 1, v1
    v_xor_b32 v3, v3, v2
    v_lshlrev_b32 v3, 4, v3
    v_add_u32 v{OG}, v4, v3
    v_add_u32 v{OG + 1}, {16384 - 1024}, v{OG}
    v_xor_b32 v{OG + 2}, 0x80, v{OG}
    v_add_u32 v{OG + 3}, {16384 + 4096 - 3072}, v{OG + 2}
    v_add_u32 v{OG + 2}, {4096 - 2048}, v{OG + 2}
    s_lshl_b32 s66, s60, 17
    s_lshl_b32 s3, s69, 8
    s_add_u32 s66, s66, s3
    s_lshl_b32 s67, s63, 17
    s_lshl_b32 s3, s62, 14
    s_add_u32 s67, s67, s3
    s_add_u32 s67, s67, s5
    v_lshlrev_b32 v10, 7, v0
    s_mov_b32 s24, s56
    s_mov_b32 s25, s57
    s_mov_b32 s26, 0x400000
    s_mov_b32 s27, 0x20000
    s_mov_b32 s32, s76
    s_mov_b32 s33, s77
    s_mov_b32 s34, 0x100000
    s_mov_b32 s35, 0x20000
    s_mul_i32 s80, s69, {QL}
    s_add_u32 s80, s80, s60
    s_add_u32 s80, s80, 8
    s_mul_i32 s80, s80, {FL}
    s_lshr_b32 s85, s60, 1
    s_mul_i32 s85, s85, {QL}
    s_and_b32 s6, s60, 1
    s_lshl_b32 s6, s6, 2
    s_add_u32 s85, s85, s6
    s_mul_i32 s85, s85, {FL}
    s_lshl_b32 s3, s69, 3
    s_add_u32 s3, s3, s60
    s_lshl_b32 s6, s62, 5
    s_add_u32 s3, s3, s6
    s_lshl_b32 s3, s3, 15
    s_add_u32 s3, s3, {PARTOFF}
    s_add_u32 s44, s58, s3
    s_addc_u32 s45, s59, 0
    s_mov_b32 s46, 0x8000
    s_mov_b32 s47, 0x20000
    s_mul_i32 s3, s62, {FSTR}
    s_add_u32 s3, s3, {FLAGOFF}
    s_add_u32 s40, s58, s3
    s_addc_u32 s41, s59, 0
    s_mov_b32 s42, {FSTR}
    s_mov_b32 s43, 0x20000
    s_lshl_b32 s3, s4, 10
    v_lshlrev_b32 v12, 4, v0
    v_add_u32 v12, s3, v12
    s_lshl_b32 s37, s62, 3
    s_add_u32 s37, s37, s60
    s_lshl_b32 s37, s37, 14
    s_lshl_b32 s3, s69, 8
    s_add_u32 s37, s37, s3
    s_lshl_b32 s3, s4, 6
    s_add_u32 s37, s37, s3
    v_lshlrev_b32 v11, 10, v2
    v_and_b32 v3, 1, v1
    v_lshlrev_b32 v3, 5, v3
    v_add_u32 v11, v11, v3
    v_lshrrev_b32 v3, 1, v1
    v_lshlrev_b32 v3, 4, v3
    v_add_u32 v11, v11, v3
    s_mov_b32 s84, 0xffff0000
    v_lshlrev_b32 v34, 4, v0
    v_add_u32 v34, s5, v34
    v_add_u32 v35, 0x10000, v34
    """
    vm, first, cur = [], [], [None]
    park, ppool, wrote, inlds = {}, [], [], []

    def issue(x, paced):
        tile, j, mode = x
        kind, t = tile
        if mode == "l":
            if paced and len(first) >= cfg.cin:
                a(f"s_waitcnt vmcnt({min(63, len(vm) - 1 - first[-cfg.cin])})")
            park[(tile, j)] = r = ppool.pop(0)
            first.append(len(vm))
            vm.append(("R", tile, j))
            g, srd = (KG + j // 2, "s[8:11]") if kind == "k" else (VG + j // 2, "s[12:15]")
            a(f"s_mov_b32 s6, {tileoff(cfg, t)}\nbuffer_load_dwordx4 {vr(r, 4)}, v{g}, {srd}, s6 offen offset:{j * 1024} nt")
            return
        if mode == "h":
            r = park.pop((tile, j))
            a(f"s_waitcnt vmcnt({min(63, len(vm) - 1 - vm.index(('R', tile, j)))})")
            off = slot[tile] * SLOT + j * 1024
            a(f"ds_write_b128 v{34 + off // 65536}, {vr(r, 4)} offset:{off % 65536}")
            wrote.append((tile, r))
            return
        if cur[0] != tile:
            cur[0] = tile
            a(f"s_add_u32 m0, s5, {slot[tile] * SLOT}")
            if kind in "kv":
                a(f"s_mov_b32 s7, {tileoff(cfg, t)}")
            elif kind == "w":
                a(f"s_add_u32 s7, s65, {t}\ns_and_b32 s7, s7, 7\ns_lshl_b32 s7, s7, 19\ns_add_u32 s7, s7, s64")
            elif kind == "x":
                a(f"s_add_u32 s7, s65, {t}\ns_and_b32 s7, s7, 7\ns_lshl_b32 s7, s7, 7")
            else:
                a(f"s_add_u32 s7, s69, {t // 2}\ns_and_b32 s7, s7, 3\ns_lshl_b32 s7, s7, 20\ns_add_u32 s7, s7, s66")
                if t % 2:
                    a("s_add_u32 s7, s7, 0x10000")
        if kind in "kv":
            if paced and len(first) >= cfg.cin:
                a(f"s_waitcnt vmcnt({min(63, len(vm) - 1 - first[-(cfg.cin + cfg.cpat[len(first) % len(cfg.cpat)])])})")
            first.append(len(vm))
        vm.append(tile)
        g, srd, fl = {"k": (KG + j // 2, "s[8:11]", "nt "), "v": (VG + j // 2, "s[12:15]", "nt "), "w": (WG + j, "s[20:23]", ""),
                      "x": (XG + j, "s[16:19]", ""), "o": (OG + j, "s[24:27]", "")}[kind]
        a(f"buffer_load_dwordx4 v{g}, {srd}, s7 offen offset:{j * 1024} {fl}lds")

    def phase(n, items, paced):
        needed = cons[n] + ([("o", 0), ("o", 1)] if n == 39 else [])
        if wrote:
            a("s_waitcnt lgkmcnt(0)")
            for t_, r_ in wrote:
                inlds.append(t_)
                ppool.append(r_)
            del wrote[:]
        assert all(vm.count(x) + inlds.count(x) == 4 for x in needed)
        last = max([i for i, x in enumerate(vm) if x in needed] + [0])
        if n == cfg.chk[0]:
            a("""
            s_lshl_b32 s68, s62, 4
            s_mov_b64 s[92:93], -1
            s_mov_b64 s[94:95], -1
            s_cmp_lg_u32 s4, 0
            s_cbranch_scc1 L_nomark
            s_load_dwordx4 s[92:95], s[78:79], s68
            L_nomark:
            """)
        if n == cfg.chk[1]:
            a("s_waitcnt lgkmcnt(0)\ns_and_b64 s[92:93], s[92:93], s[94:95]\ns_and_b32 s92, s92, s93\ns_cbranch_scc0 L_iwait\nL_iok:")
        a(f"; phase {n}: " + " ".join(f"{k}{t}" for k, t in needed) + " landed")
        a(f"s_waitcnt vmcnt({min(63, len(vm) - 1 - last)})\ns_barrier")
        for x in items:
            issue(x, paced)
        for k, m in enumerate(cfg.wopf):
            if n == 8 + m:
                a("; one row of wo into L2 (value unused)")
                a(f"s_mov_b64 exec, 0xff\nbuffer_load_dword v9, v10, s[24:27], s67 offen offset:{k * 1024}\ns_mov_b64 exec, -1")
                vm.append(("pf", k))

    assert all(p[0] == qvars[0][0] for p in qvars) and all(x[0][0] in "wx" for x in qvars[0][0])
    for x in qvars[0][0]:
        issue(x, False)
    vm0 = list(vm)
    a(setup2)
    a(f"s_and_b32 s3, s61, {len(qvars) - 1}")
    for vi in range(1, len(qvars)):
        a(f"s_cmp_eq_u32 s3, {vi}\ns_cbranch_scc1 L_qv{vi}")
    ends = []
    for vi, plan in enumerate(qvars):
        a(f"L_qv{vi}:")
        vm[:] = vm0
        del first[:]
        park.clear()
        ppool[:] = list(range(64, 256, 4))
        del wrote[:], inlds[:]
        cur[0] = None
        for n in range(6):
            phase(n, plan[n + 1], False)
        for n in (6, 7):
            phase(n, main[n - 6], False)
        k7 = max(i for i, x in enumerate(vm) if x == ("x", 7))
        ends.append((vm[k7:], [len(vm) - p for p in first if p > k7], dict(park), list(ppool), list(wrote)))
        if vi + 1 < len(qvars):
            a("s_branch L_qjoin")
    assert all(e == ends[0] for e in ends)
    a("L_qjoin:")
    cur[0] = None
    for m in range(32):
        phase(8 + m, main[2 + m], m < cfg.mfree)

    a(f"""
    v_mov_b32 v36, 1
    v_mov_b32 v37, 1
    v_mov_b32 v38, 1
    v_mov_b32 v39, 1
    v_lshlrev_b32 v8, 4, v0
    s_mul_i32 s3, s69, {FL}
    s_add_u32 s83, s85, s3
    """)
    for j in range(1, 4):
        a(f"s_add_u32 s3, s69, {j}\ns_and_b32 s3, s3, 3\ns_mul_i32 s3, s3, {FL}\ns_add_u32 s{92 + j}, s85, s3")
    p1 = "\n".join(f"s_load_dword s{87 + j}, s[40:41], s{92 + j} glc" for j in range(1, 4))
    a(f"""
    s_mov_b32 s81, 0
    s_cmp_eq_u32 s4, 1
    s_cbranch_scc1 L_scout
    s_barrier
    s_cmp_lg_u32 s4, 0
    s_cbranch_scc1 L_h1ok
    s_mov_b64 exec, 0xff
    buffer_store_dwordx4 v[36:39], v8, s[40:43], s83 offen sc1
    s_mov_b64 exec, -1
    s_waitcnt vmcnt(1)
    s_branch L_h1go
    L_scout:
    {p1}
    s_barrier
    s_branch L_h1t
    L_h1:
    {p1}
    L_h1t:
    s_add_u32 s81, s81, 1
    s_cmp_ge_u32 s81, {SPIN}
    s_waitcnt lgkmcnt(0)
    s_cbranch_scc1 L_h1ok
    s_and_b32 s88, s88, s89
    s_and_b32 s88, s88, s90
    s_cbranch_scc0 L_h1
    L_h1ok:
    s_waitcnt vmcnt(0)
    L_h1go:
    s_barrier
    s_barrier
    s_mov_b32 s81, 0
    s_mov_b32 s82, 0
    L_hpoll:
    s_load_dwordx8 s[88:95], s[40:41], s80 glc
    s_add_u32 s81, s81, 1
    s_cmp_ge_u32 s81, {SPIN}
    s_cselect_b32 s86, 0xff, 0
    s_waitcnt lgkmcnt(0)
    s_or_b64 s[88:89], s[88:89], s[90:91]
    s_or_b64 s[92:93], s[92:93], s[94:95]
    s_or_b64 s[88:89], s[88:89], s[92:93]
    s_or_b32 s88, s88, s89
    s_and_b32 s88, s88, 0xff
    s_or_b32 s86, s86, s88
    s_andn2_b32 s86, s86, s82
    s_cbranch_scc0 L_hpoll
    s_or_b32 s82, s82, s86
    """)
    PB, SUM, TM = 32, 64, 72
    for x in range(8):
        a(f"""
        s_bitcmp1_b32 s86, {x}
        s_cbranch_scc0 L_hs{x}
        s_mov_b32 s7, {x * 4096}
        buffer_load_dwordx4 {vr(PB + 4 * x, 4)}, v12, s[44:47], s7 offen sc1
        L_hs{x}:
        """)
    a("s_cmp_eq_u32 s82, 0xff\ns_cbranch_scc0 L_hpoll\ns_waitcnt vmcnt(0)")
    for x in range(8):
        for i in range(4):
            d = SUM if x == 0 else TM
            a(f"v_lshlrev_b32 v{d + 2 * i}, 16, v{PB + 4 * x + i}\nv_and_b32 v{d + 2 * i + 1}, s84, v{PB + 4 * x + i}")
        if x:
            for i in range(0, 8, 2):
                a(f"v_pk_add_f32 {vr(SUM + i, 2)}, {vr(SUM + i, 2)}, {vr(TM + i, 2)}")
    for i in range(4):
        a(f"v_cvt_pk_bf16_f32 v{SUM + i}, v{SUM + 2 * i}, v{SUM + 2 * i + 1}")
    a(f"""
    s_nop 1
    v_permlane16_swap_b32 v{SUM}, v{SUM + 2}
    v_permlane16_swap_b32 v{SUM + 1}, v{SUM + 3}
    buffer_store_dwordx4 {vr(SUM, 4)}, v11, s[32:35], s37 offen nt
    s_endpgm
    L_iwait:
    v_lshlrev_b32 v8, 2, v0
    v_add_u32 v8, s68, v8
    s_mov_b32 s81, 0
    s_mov_b64 exec, 15
    L_ipoll:
    global_load_dword v9, v8, s[78:79] sc1
    s_add_u32 s81, s81, 1
    s_cmp_ge_u32 s81, {SPIN}
    s_waitcnt vmcnt(0)
    s_cbranch_scc1 L_ipok
    v_cmp_ne_u32 vcc, 0, v9
    s_nop 0
    s_cmp_eq_u32 vcc_lo, 15
    s_cbranch_scc0 L_ipoll
    L_ipok:
    s_mov_b64 exec, -1
    s_branch L_iok
    """)


def compute_waves(a, cfg, slot):
    KA, VA, XA = 16, 20, 28
    T0, T1, T2, T3, OOFF = 1, 2, 3, 30, 31
    ONES, NM, L, Q, O = 32, 36, 44, 52, 84
    S = [148, 180]
    F, NF = 212, 8
    XF = S[1]
    LB = [L, 248]
    KD = 10
    a(f"""
    L_attn:
    s_getpc_b64 s[40:41]
    L_pc:
    s_sub_u32 s40, s40, L_pc-{NAME}_kernel
    s_subb_u32 s41, s41, 0
    s_lshl_b32 s3, s61, 2
    s_add_u32 s3, s3, s4
    s_lshl_b32 s3, s3, 9
    v_and_b32 v1, 3, v0
    v_lshlrev_b32 v1, 7, v1
    v_add_u32 v1, s3, v1
    v_min_u32 v1, L_end-{NAME}_kernel, v1
    global_load_dword v247, v1, s[40:41]
    v_and_b32 v245, 15, v0
    v_lshrrev_b32 v246, 4, v0
    v_and_b32 v{T0}, 12, v245
    v_lshlrev_b32 v{T0}, 1, v{T0}
    v_and_b32 v{T1}, 3, v245
    v_or_b32 v{T0}, v{T0}, v{T1}
    v_lshlrev_b32 v{T0}, 8, v{T0}
    v_and_b32 v{T1}, 1, v246
    v_lshlrev_b32 v{T1}, 1, v{T1}
    v_lshrrev_b32 v{T2}, 1, v246
    v_or_b32 v{T1}, v{T1}, v{T2}
    v_lshlrev_b32 v{KD}, 4, v{T1}
    v_add_u32 v{KD}, v{T0}, v{KD}
    v_xor_b32 v{T1}, v{T1}, v245
    v_lshlrev_b32 v{T1}, 4, v{T1}
    v_add_u32 v{KA}, v{T0}, v{T1}
    v_xor_b32 v{KA + 1}, 64, v{KA}
    v_xor_b32 v{KA + 2}, 0x80, v{KA}
    v_xor_b32 v{KA + 3}, 0xc0, v{KA}
    v_lshrrev_b32 v{T0}, 2, v245
    v_lshlrev_b32 v{T1}, 3, v246
    v_add_u32 v{T1}, v{T1}, v{T0}
    v_lshlrev_b32 v{T1}, 8, v{T1}
    v_and_b32 v{T2}, 1, v246
    v_lshlrev_b32 v{T2}, 2, v{T2}
    v_or_b32 v{T0}, v{T0}, v{T2}
    v_lshlrev_b32 v{T0}, 5, v{T0}
    v_add_u32 v{T1}, v{T1}, v{T0}
    v_and_b32 v{T0}, 3, v0
    v_lshlrev_b32 v{T0}, 3, v{T0}
    v_add_u32 v{T1}, v{T1}, v{T0}
    v_add_u32 v{VA}, {4 * SLOT}, v{T1}
    """)
    for db in range(1, 8):
        a(f"v_xor_b32 v{VA + db}, {db * 32}, v{VA}")
    a(f"""
    v_lshrrev_b32 v{T0}, 1, v245
    v_xor_b32 v{T0}, v{T0}, v246
    v_lshlrev_b32 v{T0}, 4, v{T0}
    v_lshlrev_b32 v{T1}, 7, v245
    v_add_u32 v{T0}, v{T0}, v{T1}
    s_lshl_b32 s5, s4, 12
    s_add_u32 s3, s5, {6 * SLOT}
    v_add_u32 v{XA}, s3, v{T0}
    v_xor_b32 v{XA + 1}, 64, v{XA}
    v_lshlrev_b32 v{OOFF}, 4, v0
    s_mov_b32 s84, {CSCALE:#x}
    s_mov_b32 s85, {CSCALE:#x}
    s_mov_b32 s36, {THRESH:#x}
    """)
    a(f"""
    v_and_b32 v{T0}, {cfg.omask}, v0
    v_cmp_eq_u32 vcc, 0, v{T0}
    v_mov_b32 v{T1}, 0x3f803f80
    s_nop 0
    """)
    for i in range(4):
        a(f"v_cndmask_b32 v{ONES + i}, 0, v{T1}, vcc")
    a(f"""
    s_lshl_b32 s3, s4, 3
    s_add_u32 s3, s3, s60
    s_lshl_b32 s65, s62, 5
    s_add_u32 s3, s3, s65
    s_lshl_b32 s3, s3, 15
    s_lshl_b32 s68, s69, 13
    s_mov_b32 s30, 0x8000
    s_mov_b32 s31, 0x20000
    s_mul_i32 s66, s69, {QL * FL}
    s_mul_i32 s67, s4, {2 * FL}
    s_add_u32 s67, s67, s66
    s_add_u32 s67, s67, {8 * FL}
    s_lshl_b32 s7, s60, 2
    s_add_u32 s67, s67, s7
    s_lshl_b32 s6, s69, 3
    s_add_u32 s6, s6, s65
    s_lshl_b32 s6, s6, 15
    s_add_u32 s6, s6, {PARTOFF}
    s_lshl_b32 s37, s4, 16
    s_lshl_b32 s7, s60, 12
    s_add_u32 s37, s37, s7
    s_add_u32 s64, s37, 0x8000
    s_lshl_b32 s82, s62, 2
    s_add_u32 s82, s82, s69
    s_lshl_b32 s82, s82, 2
    s_mul_i32 s7, s62, {FSTR}
    s_add_u32 s7, s7, {FLAGOFF}
    s_mov_b32 s46, 0x40000
    s_mov_b32 s47, 0x20000
    s_mov_b32 s42, {FSTR}
    s_mov_b32 s43, 0x20000
    v_lshlrev_b32 v12, 4, v0
    v_mul_u32_u24 v11, {FL}, v0
    s_waitcnt lgkmcnt(0)
    s_add_u32 s28, s58, s3
    s_addc_u32 s29, s59, 0
    s_add_u32 s44, s58, s6
    s_addc_u32 s45, s59, 0
    s_add_u32 s40, s58, s7
    s_addc_u32 s41, s59, 0
    s_add_u32 s3, s65, s63
    s_lshl_b32 s3, s3, 18
    s_add_u32 s8, s50, s3
    s_addc_u32 s9, s51, 0
    s_mov_b32 s10, 0x40000
    s_mov_b32 s11, 0x20000
    s_lshl_b32 s86, s69, 1
    s_add_u32 s86, s86, s62
    s_xor_b32 s86, s86, s60
    s_and_b32 s86, s86, 7
    s_or_b32 s86, s86, s4
    """)

    def blk(base, u, qb, e):
        return base + ((u * 2 + qb) * 2 + e) * 4

    class Slot:
        def __init__(self, reads, m):
            self.reads, self.m = reads, m
            self.f = [[] for _ in m]
            self.pre = []
            self.bar = None
            self.rpos = None
    stream = []

    def flush():
        n = len(stream)
        out, pend, nxt = [], [], [0]
        gate = [min([k for k in range(n) if stream[k].bar] + [n])]

        def take(upto):
            while nxt[0] < min(upto + 1, gate[0]):
                pend.extend((nxt[0], r) for r in stream[nxt[0]].reads)
                nxt[0] += 1

        def emit(k):
            for _ in range(min(k, len(pend))):
                tag, r = pend.pop(0)
                a(r)
                out.append(tag)
            assert len(out) <= 15

        def barrier(k):
            assert gate[0] == k and nxt[0] == k and not pend
            if out:
                a("s_waitcnt lgkmcnt(0)")
                del out[:]
            a("s_barrier")
            gate[0] = min([x for x in range(k + 1, n) if stream[x].bar] + [n])
        take(1)
        emit(99)
        for i, s_ in enumerate(stream):
            for x in s_.pre:
                if x == "@BAR":
                    barrier(i)
                    take(i + 1)
                    emit(99)
                else:
                    a(x)
            lead = len(s_.m) - 4
            early = i + 2 < n and stream[i + 2].bar == "early"
            take(i + 2)
            for k, m in enumerate(s_.m):
                if k == lead:
                    assert nxt[0] > i and not any(t <= i for t, _ in pend)
                    if any(x <= i for x in out):
                        keep = [x for x in out if x > i]
                        a(f"s_waitcnt lgkmcnt({len(keep)})")
                        out[:] = keep
                if early and k == lead + 2:
                    barrier(i + 2)
                    take(i + 3)
                    emit(max(0, len(pend) - 6))
                    share = -(-len(pend) // 6)
                a(m)
                if k >= lead:
                    g = k - lead
                    if early:
                        emit(share if g >= 2 else 0)
                    elif s_.rpos and len(pend) <= len([p for p in s_.rpos if p >= g]):
                        emit(s_.rpos.count(g))
                    else:
                        emit(-(-len(pend) // (4 - g)))
                for x in s_.f[k]:
                    a(x)
        assert not out and not pend
        del stream[:]

    def quad(acc_, fr, b_, q0, c0):
        m = []
        for q, k in ((q0, 0), (q0, 1), (1 - q0, 1), (1 - q0, 0)):
            d = vr(acc_(q), 4)
            c = c0(q) if (len(m) % 2 == 0 and c0) else d
            m.append(f"{MF} {d}, {vr(fr[k], 4)}, {vr(b_(k, q), 4)}, {c}")
        return m

    def add(slots, bar, pre=(), note=""):
        slots[0].bar = bar
        slots[0].pre = list(pre) + [f"; ---- {note}"] + slots[0].pre
        stream.extend(slots)
        return slots

    fcnt, vwin = [0], [4]

    def nextf():
        fcnt[0] += 1
        return F + 4 * ((fcnt[0] - 1) % NF)

    def trreads(ar, off, dst):
        assert 0 <= off < 65536 - 1024
        return [f"ds_read_b64_tr_b16 {vr(dst, 2)}, v{ar} offset:{off}", f"ds_read_b64_tr_b16 {vr(dst + 2, 2)}, v{ar} offset:{off + 1024}"]

    for j in range(8):
        pre = []
        if j == cfg.clr[0]:
            pre += lines("s_cmp_eq_u32 s86, 0\ns_cbranch_scc1 L_clear\nL_cleared:")
        if j == cfg.clr[1]:
            pre += lines("s_cmp_eq_u32 s86, 0\ns_cbranch_scc1 L_mark\nL_marked:")
        ws_, xs_ = slot[("w", j)], slot[("x", j)]
        sl_, xf = [], XF + 16 * (j % 2)
        for db in range(8):
            fr = [nextf(), nextf()]
            r = [x for ks in range(2) for x in trreads(VA + db, (ws_ - 4) * SLOT + ks * 8192, fr[ks])]
            if db == 0:
                xr = lambda ks, qb: f"ds_read_b128 {vr(xf + 8 * ks + 4 * qb, 4)}, v{XA + ks} offset:{(xs_ - 6) * SLOT + qb * 2048}"
                r = [xr(0, 0), xr(1, 0), xr(1, 1), xr(0, 1)] + r
            sl_.append(Slot(r, quad(lambda q: blk(O, db // 2, q, db % 2), fr, lambda k, q: xf + 8 * k + 4 * q, db % 2,
                                    (lambda q: "0") if j == 0 else None)))
        add(sl_, "late" if j == 0 else "early", pre + (["@BAR"] if j == 0 else []), f"Q projection, step {j}")
    qcv = ["; Q * log2(e)/sqrt(128) -> bf16 operand fragments"]
    for fr in range(8):
        qcv += [f"v_pk_mul_f32 {vr(O + 8 * fr + 2 * i, 2)}, {vr(O + 8 * fr + 2 * i, 2)}, s[84:85]" for i in range(4)]
        qcv += [f"v_cvt_pk_bf16_f32 v{Q + 4 * fr + i}, v{O + 8 * fr + 2 * i}, v{O + 8 * fr + 2 * i + 1}" for i in range(4)]
        if fr > 0:
            p = Q + 4 * (fr - 1)
            qcv += [f"v_permlane16_swap_b32 v{p}, v{p + 2}", f"v_permlane16_swap_b32 v{p + 1}, v{p + 3}"]
    p = Q + 28
    qcv += ["s_nop 1", f"v_permlane16_swap_b32 v{p}, v{p + 2}", f"v_permlane16_swap_b32 v{p + 1}, v{p + 3}"]

    def qk(tile, sb, first=False):
        sl, out = slot[("k", tile)], []
        for kb in range(4):
            ks, e = kb // 2, kb % 2
            for g in range(2):
                s0 = 2 * (g ^ (kb % 2))
                fr = [nextf(), nextf()]
                rd = [f"ds_read_b128 {vr(fr[k], 4)}, v{KA + s0 + k} offset:{sl * SLOT + ks * 8192 + e * 1024}" for k in range(2)]
                c0 = None if g else ((lambda q: "0") if first else (lambda q: vr(NM + 4 * q, 4)))
                out.append(Slot(rd, quad(lambda q: blk(sb, ks, q, e), fr, lambda k, q: Q + 4 * (2 * (s0 + k) + q), g, c0)))
                out[-1].rpos = [1, 3]
        return out

    def maxchain(sb):
        out = [[], []]
        for qb, t in ((0, T0), (1, T1)):
            regs = [blk(sb, ks, qb, 0) + i for ks in range(2) for i in range(8)]
            out[qb].append(f"v_max3_f32 v{t}, v{regs[0]}, v{regs[1]}, v{regs[2]}")
            for i in range(3, 15, 2):
                out[qb].append(f"v_max3_f32 v{t}, v{t}, v{regs[i]}, v{regs[i + 1]}")
            out[qb].append(f"v_max_f32 v{t}, v{t}, v{regs[15]}")
        return [x for p in zip(*out) for x in p]

    def rescale(sb, first, nb=None, lo=None):
        o = lines(f"""
        v_mov_b32 v{T2}, v{T0}
        v_mov_b32 v{T3}, v{T1}
        s_nop 1
        v_permlane32_swap_b32 v{T0}, v{T2}
        v_permlane32_swap_b32 v{T1}, v{T3}
        v_max_f32 v{T0}, v{T0}, v{T2}
        v_max_f32 v{T1}, v{T1}, v{T3}
        v_mov_b32 v{T2}, v{T0}
        v_mov_b32 v{T3}, v{T1}
        s_nop 1
        v_permlane16_swap_b32 v{T0}, v{T2}
        v_permlane16_swap_b32 v{T1}, v{T3}
        """)
        if first:
            o += [f"v_max_f32 v{T0}, v{T0}, v{T2}", f"v_max_f32 v{T1}, v{T1}, v{T3}"]
        else:
            o += [f"v_max3_f32 v{T0}, v{T0}, v{T2}, 0", f"v_max3_f32 v{T1}, v{T1}, v{T3}, 0",
                  f"v_exp_f32 v{T2}, -v{T0}", f"v_exp_f32 v{T3}, -v{T1}"]
        for qb, t in ((0, T0), (1, T1)):
            for i in range(4):
                r = NM + 4 * qb + i
                o.append(f"v_sub_f32 v{r}, {'0' if first else f'v{r}'}, v{t}")
        for b_ in (sb, nb):
            for ks in range(2 if b_ else 0):
                for qb, t in ((0, T0), (1, T1)):
                    o += [f"v_sub_f32 v{blk(b_, ks, qb, 0) + i}, v{blk(b_, ks, qb, 0) + i}, v{t}" for i in range(8)]
        if not first:
            for qb, t in ((0, T2), (1, T3)):
                o += [f"v_mul_f32 v{lo + 4 * qb + i}, v{t}, v{lo + 4 * qb + i}" for i in range(4)]
                for u in range(4):
                    o += [f"v_mul_f32 v{blk(O, u, qb, 0) + i}, v{t}, v{blk(O, u, qb, 0) + i}" for i in range(8)]
        return o

    exps = lambda b: [f"v_exp_f32 v{b + i}, v{b + i}" for i in range(32)]
    cvto = lambda src, dst: [f"v_cvt_pk_bf16_f32 v{dst + 8 * (g // 4) + g % 4}, v{src + 2 * g}, v{src + 2 * g + 1}" for g in range(16)]

    def ones(src, t):
        o = []
        for q, ks in ((0, 0), (0, 1), (1, 0), (1, 1)):
            d = vr(LB[t % 2] + 4 * q, 4)
            c = d if len(o) % 2 else ("0" if t == 0 else vr(LB[(t - 1) % 2] + 4 * q, 4))
            o.append(f"{MF} {d}, {vr(ONES, 4)}, {vr(blk(src, ks, q, 0), 4)}, {c}")
        return o

    add(qk(0, S[0], first=True), "early", qcv, "scores of the first key tile")
    carry = ["; row maxima of the first tile become the softmax reference", "s_nop 7"] + maxchain(S[0]) + rescale(S[0], True)
    for t in range(16):
        cur, nxt = S[t % 2], S[(t + 1) % 2]
        ex, cv = exps(cur), cvto(cur, cur)
        chk = [f"v_max_f32 v{T0}, v{LB[t % 2]}, v{LB[t % 2] + 4}", f"v_cmp_lt_f32 vcc, s36, v{T0}"]
        br = ["; a row sum above 2^18: redo this tile against the true maxima before its weights are used",
              f"s_cbranch_vccnz L_rare{t}", f"L_back{t}:"]
        sl = slot[("v", t)]
        if t < 15:
            A_ = add(qk(t + 1, nxt), "early", carry, f"step {t}: scores(t+1) - reference; exp and row sums of tile t")
            k = c = 0
            chain = [(i, h) for i in range(6) for h in (0, 2)]
            other = [(i, h) for i in range(6) for h in (1, 3) if (h == 1 or i % 2) and (i, h) != (5, 3)]
            ne = {g: 1 for g in chain}
            rest = 32 - len(chain)
            for n_, g in enumerate(other):
                ne[g] = (rest * (n_ + 1) + len(other) - 1) // len(other) - (rest * n_ + len(other) - 1) // len(other)
            for i in range(6):
                for h in range(4):
                    if h == 1 or (h == 3 and i % 2):
                        lim = c + 3
                        while 2 * c + 2 <= k and c < min(14, lim):
                            A_[i].f[h].append(cv[c])
                            c += 1
                    for _ in range(ne.get((i, h), 0)):
                        A_[i].f[h].append(ex[k])
                        k += 1
            assert k == 32 and c == 14
            A_[6].m = ones(cur, t) + A_[6].m
            A_[6].f = [cv[14:], [], [], []] + A_[6].f
            carry = []
            if t > 0:
                A_[7].f[0].append(chk[0])
                A_[7].f[1].append(chk[1])
                carry = br
        else:
            carry += ["; last tile: final row sums first, then O and this tile's weights are normalised before the last P.V"]
            carry += ex + cvto(cur, nxt) + ones(nxt, t)
            if sl < 4:
                carry += [f"v_subrev_u32 v{VA + db}, {4 * SLOT}, v{VA + db}" for db in range(8)]
                vwin[0] = 0
            else:
                carry += ["s_nop 7"]
            carry += chk + ["s_nop 1"] + br + [f"v_rcp_f32 v{T1}, v{LB[1]}", f"v_rcp_f32 v{T2}, v{LB[1] + 4}", "s_nop 0"]
            pk = lambda r, qb: f"v_pk_mul_f32 {vr(r, 2)}, {vr(r, 2)}, {vr(T1, 2)} {['op_sel_hi:[1,0]', 'op_sel:[0,1]'][qb]}"
            carry += [pk(blk(O, u, qb, 0) + i, qb) for u in range(4) for qb in range(2) for i in range(0, 8, 2)]
            carry += [pk(blk(cur, ks, qb, 0) + i, qb) for ks in range(2) for qb in range(2) for i in range(0, 8, 2)]
            carry += ["@BAR"] + cv
        B_ = []
        for db in range(8):
            fr = [nextf(), nextf()]
            m = quad(lambda q: blk(O, db // 2, q, db % 2), fr, lambda k, q: blk(cur, k, q, 0), 1 - db % 2, (lambda q: "0") if t == 0 else None)
            B_.append(Slot([x for ks in range(2) for x in trreads(VA + db, (sl - vwin[0]) * SLOT + ks * 8192, fr[ks])], m))
        if t == 15:
            B15 = add(B_, "late", carry, "last P.V, O -> bf16 fragments -> d_ws")
            break
        add(B_, "early", carry, f"step {t}: P.V")
        carry = []

    ACC, WA, wins = S[0], 4, (0, 4)
    acc = lambda nb, qb: ACC + 4 * (2 * nb + qb)
    ofr = {(0, u, qb): blk(O, u, qb, 0) for u in range(4) for qb in range(2)}
    pool = list(range(Q, Q + 32, 4)) + [O + 8 * i + 4 for i in range(8)] + list(range(32, 52, 4)) + [244, 248, 252]
    for j in range(1, 4):
        for u in range(4):
            for qb in range(2):
                ofr[(j, u, qb)] = pool.pop(0)
    assert all(slot[("o", k)] >= 6 for k in range(4)) and all(slot[("o", k)] < 6 for k in range(4, 8))
    for db in range(8):
        B15[max(0, db - 1)].f[1].append(f"v_add_u32 v{VA + db}, {(6 - vwin[0]) * SLOT}, v{VA + db}")

    def oslot(j, c, nb, ar, w0, q0):
        fr = [nextf(), nextf()]
        rd = [x for k in range(2) for x in trreads(ar, (slot[("o", 2 * j + c)] - w0) * SLOT + k * 8192, fr[k])]
        return Slot(rd, quad(lambda q: acc(nb, q), fr, lambda k, q: ofr[(j, 2 * c + k, q)], q0, (lambda q: "0") if j == 0 and c == 0 else None))

    kouter = lambda j: [oslot(j, c, nb, VA + nb, 6, nb % 2) for c in range(2) for nb in range(8)]
    OWN = add(kouter(0), None, (), "output projection: own head")
    both = B15 + OWN
    for u in range(4):
        ins = []
        for qb in range(2):
            b, fi = blk(O, u, qb, 0), 2 * u + qb
            ins += [f"v_cvt_pk_bf16_f32 v{b + i}, v{b + 2 * i}, v{b + 2 * i + 1}" for i in range(4)]
            if fi == 4:
                ins.append(f"v_add_u32 v{OOFF}, 4096, v{OOFF}")
            ins.append(f"buffer_store_dwordx4 {vr(b, 4)}, v{OOFF}, s[28:31], s68 offen offset:{(fi % 4) * 1024} sc1")
        share = [1, 2, 1, 2, 1, 2, 1, 2] if u < 3 else [5, 6]
        for k, n_ in enumerate(share):
            both[2 * u + 3 + k // 4].f[k % 4] += ins[:n_]
            ins = ins[n_:]
        assert not ins
    OWN[cfg.pub].f[3] += ["s_waitcnt vmcnt(0)", "s_barrier"]
    flush()
    a("; released once the other three heads' O is in d_ws\ns_barrier")
    oloads = []
    for j in range(1, 4):
        for fi in range(8):
            pre = {0: [f"s_add_u32 s7, s69, {j}", "s_and_b32 s7, s7, 3", "s_lshl_b32 s7, s7, 13"], 4: ["s_add_u32 s7, s7, 4096"]}.get(fi, [])
            oloads.append(pre + [f"buffer_load_dwordx4 {vr(ofr[(j, fi // 2, fi % 2)], 4)}, v12, s[28:31], s7 offen offset:{(fi % 4) * 1024} sc1"])
    for x in oloads[:cfg.nup]:
        a("\n".join(x))
    R = kouter(1)
    for nb in range(8):
        R[16 + 4 * nb - 3].f[1] += [f"v_subrev_u32 v{WA + 2 * (nb % 2) + wi}, {(6 - w0) * SLOT}, v{VA + nb}" for wi, w0 in enumerate(wins)]
        for j, c in ([(2, 0), (2, 1), (3, 0), (3, 1)] if nb % 2 == 0 else [(3, 1), (3, 0), (2, 1), (2, 0)]):
            wi = 0 if slot[("o", 2 * j + c)] < 4 else 1
            R.append(oslot(j, c, nb, WA + 2 * (nb % 2) + wi, wins[wi], len(R) % 2))
            if nb == 0:
                R[-1].pre.append(f"s_waitcnt vmcnt({24 - 8 * (j - 1) - 4 * (c + 1)})")
    at = []
    for k, x in enumerate(oloads[cfg.nup:]):
        at.append((k * cfg.ospan) // (24 - cfg.nup))
        R[at[-1] // 2].f[1 + 2 * (at[-1] % 2)] += x
    for c in range(2):
        R[8 * c].pre.append(f"s_waitcnt vmcnt({cfg.nup + sum(1 for v in at if v < 16 * c) - 4 * (c + 1)})")

    def pack(np_):
        o = []
        for qb in range(2):
            t = O + 8 * (2 * (np_ % 2) + qb)
            for e in range(2):
                r = acc(2 * np_ + e, qb)
                o += [f"v_cvt_pk_bf16_f32 v{t + 2 * e}, v{r}, v{r + 1}", f"v_cvt_pk_bf16_f32 v{t + 2 * e + 1}, v{r + 2}, v{r + 3}"]
            o.append(f"buffer_store_dwordx4 {vr(t, 4)}, v12, s[44:47], s{37 if qb == 0 else 64} offen offset:{np_ * 1024} sc1")
        return o
    for np_ in range(3):
        for k, x in enumerate(pack(np_)):
            g = [0, 1, 2, 4, 5, 6, 8, 9, 10, 13][k]
            R[16 + 8 * (np_ + 1) + 1 + g // 4].f[g % 4].append(x)
    add(R, None, (), "output projection: the other three heads, partial sums -> d_ws")
    flush()
    a("s_lshl_b32 s3, 1, s60\nv_mov_b32 v4, s3\ns_nop 5")
    a("\n".join(pack(3)))
    a(f"""
    s_barrier
    s_waitcnt vmcnt(0)
    s_mov_b64 exec, 3
    buffer_store_dword v4, v11, s[40:43], s67 offen sc1
    s_endpgm
    L_clear:
    v_mov_b32 v248, 0
    v_mov_b32 v249, 0
    v_mov_b32 v250, 0
    v_mov_b32 v251, 0
    v_lshrrev_b32 v244, 3, v0
    v_mul_u32_u24 v244, {FL}, v244
    v_and_b32 v245, 7, v0
    v_lshlrev_b32 v245, 4, v245
    v_add_u32 v244, v244, v245
    s_add_u32 s3, s66, {8 * FL}
    buffer_store_dwordx4 v[248:251], v244, s[40:43], s66 offen sc1
    buffer_store_dwordx4 v[248:251], v244, s[40:43], s3 offen sc1
    s_branch L_cleared
    L_mark:
    v_mov_b32 v244, s82
    v_mov_b32 v245, 1
    s_mov_b64 exec, 1
    s_waitcnt vmcnt(0)
    global_store_dword v244, v245, s[78:79] sc1
    s_mov_b64 exec, -1
    s_branch L_marked
    """)
    for t in range(1, 16):
        a(f"L_rare{t}:\ns_mov_b32 s16, {tileoff(cfg, t)}\ns_call_b64 s[38:39], L_redo{2 if t == 15 else t % 2}\ns_branch L_back{t}")
    for v in range(3):
        t = (2, 1, 15)[v]
        cur, nxt = S[t % 2], S[(t + 1) % 2]
        a(f"L_redo{v}:\ns_add_u32 s17, s16, 8192")
        for kb in range(4):
            ks, e = kb // 2, kb % 2
            for s_ in range(4):
                a(f"buffer_load_dwordx4 {vr(F + 16 + 4 * s_, 4)}, v{KD}, s[8:11], s{16 + ks} offen offset:{e * 1024 + s_ * 64}")
            a("s_waitcnt vmcnt(0)")
            for q in range(2):
                for s_ in range(4):
                    d = vr(blk(cur, ks, q, e), 4)
                    a(f"{MF} {d}, {vr(F + 16 + 4 * s_, 4)}, {vr(Q + 4 * (2 * s_ + q), 4)}, {d if s_ else vr(NM + 4 * q, 4)}")
        a("s_nop 7")
        a("\n".join(maxchain(cur) + rescale(cur, False, nxt if t < 15 else None, LB[(t - 1) % 2])))
        dst = cur if t < 15 else nxt
        a("\n".join(exps(cur) + cvto(cur, dst) + ones(dst, t)))
        a("s_nop 7\ns_setpc_b64 s[38:39]")


NOTES = """;
;   1. the four heads {x + 8c} of a batch exchange O; workgroup c multiplies all four by wo[:, 128c .. 128c+127]
"""


def build(cfg):
    a = Asm()
    cons, qvars, main, slot = schedule(cfg)
    a("""
    s_cmp_ge_u32 s2, 256
    s_cbranch_scc1 L_end
    s_load_dwordx8 s[48:55], s[0:1], 0
    s_load_dwordx2 s[56:57], s[0:1], 32
    s_load_dwordx2 s[58:59], s[0:1], 56
    s_load_dwordx4 s[76:79], s[0:1], 40
    v_lshrrev_b32 v1, 6, v0
    v_and_b32 v0, 63, v0
    v_readfirstlane_b32 s4, v1
    s_and_b32 s60, s2, 7
    s_lshr_b32 s61, s2, 3
    s_and_b32 s62, s61, 7
    s_lshr_b32 s69, s61, 3
    s_lshl_b32 s65, s69, 1
    s_add_u32 s65, s65, s62
    s_lshl_b32 s63, s69, 3
    s_add_u32 s63, s63, s60
    s_cmp_lt_u32 s4, 4
    s_cbranch_scc1 L_attn
    """)
    dma_waves(a, cfg, cons, qvars, main, slot)
    compute_waves(a, cfg, slot)
    a("L_end:\ns_endpgm")
    name = NAME + "_kernel"
    return (HEADER + "; @launch grid=(256,1,1) block=(512,1,1) lds=163840\n" + NOTES
            + '.amdgcn_target "amdgcn-amd-amdhsa--gfx950"\n.text\n'
            + f".globl {name}\n.p2align 8\n.type {name},@function\n{name}:\n"
            + a.text() + '.section .rodata,"a"\n.p2align 6\n' + kd(name, 256, 256))


def mk(name, **kw):
    c = Cfg()
    for k, v in kw.items():
        assert hasattr(c, k), k
        setattr(c, k, v)
    open(name, "w").write(build(c))


if __name__ == "__main__":
    mk(sys.argv[1] if len(sys.argv) > 1 else "final.s")
```

```python
from gen_x import *
mk("v27a.s")
mk("v27b.s", nup=12, pub=9)
mk("v27c.s", nup=16, pub=9)
mk("v27d.s", nup=12, pub=7)
mk("v27e.s", nup=12, pub=9, ospan=14)
mk("v27f.s", nup=12, pub=9, cpat=(0, 0, 0, 0, 0, 0, 0, -1))
mk("v27g.s", nup=12, pub=9, cpat=(0, 0, 0, -1))
mk("v27h.s", nup=12, pub=9, cpat=(0, 1, 1, 1))
mk("v27i.s", nup=12, pub=9, mfree=27)
mk("v27j.s", nup=8, pub=9, ospan=16)
```

```python
import sys, struct, math
from common import NAME, HEADER, kd

SLOT = 16384
MF = "v_mfma_f32_16x16x32_bf16"
SPIN = 1 << 21
FLAGOFF, PARTOFF = 0x1000000, 0x2000000
FL, QL = 256, 16
FSTR = 4 * QL * FL


class Cfg:
    qplan = [["pp", "pkkkkl", "p", "p", "p", "p", "p"], ["pp", "p", "p", "pk", "p", "pkkkl", "p"]]
    cin = 5
    first = (4, 4, 4, 3)
    lend = 8
    mfree = 26
    wostart, woend = 6, 8
    wopf = (0, 1, 2, 3)
    tm = (4, 2, 8, 1)
    clr, chk = (0, 4), (16, 22)
    pub, nup = 9, 12


def tileoff(cfg, t):
    x = 0
    for k, m in enumerate(cfg.tm):
        x ^= m * ((t >> k) & 1)
    return x * SLOT


def f32bits(x):
    return struct.unpack("<I", struct.pack("<f", x))[0]


CSCALE = f32bits(math.log2(math.e) / math.sqrt(128.0))
THRESH = f32bits(2.0 ** 18)


def vr(b, n):
    return f"v[{b}:{b + n - 1}]"


def lines(txt):
    return [x.strip() for x in txt.split("\n") if x.strip()]


class Asm:
    def __init__(self):
        self.l = []

    def __call__(self, s):
        for x in lines(s):
            self.l.append(("" if x.endswith(":") else "    ") + x)

    def text(self):
        return "\n".join(self.l) + "\n"


def schedule(cfg):
    cons = [[("w", t), ("x", t)] for t in range(8)]
    kv = [("k", 0)]
    for t in range(16):
        if t < 15:
            kv.append(("k", t + 1))
        kv.append(("v", t))
    cons += [[t] for t in kv]
    slot = {}
    for t in range(8):
        slot[("w", t)] = 4 + t % 3
        slot[("x", t)] = 7 + t % 3
    for t in range(4):
        slot[("k", t)] = t
    qvars = []
    for var in cfg.qplan:
        nx, busy, plan = {"p": 0, "k": 0, "l": 0}, {}, []
        for n, txt in enumerate(var, -1):
            if n >= 1:
                for t in cons[n - 1]:
                    del busy[slot[t]]
            out = []
            for c in txt:
                if c == "l":
                    out += [(("v", nx[c]), j, "l") for j in range(4)]
                    nx[c] += 1
                    continue
                tiles = [("w", nx[c]), ("x", nx[c])] if c == "p" else [(c, nx[c])]
                nx[c] += 1
                for t in tiles:
                    assert slot[t] not in busy
                    busy[slot[t]] = t
                    out += [(t, j, "d") for j in range(4)]
            plan.append(out)
            assert all(busy.get(slot[t]) == t for t in cons[n + 1])
        assert nx["p"] == 8
        qvars.append(plan)
    flat = [sorted(x for p in v for x in p) for v in qvars]
    assert all(f == flat[0] for f in flat)
    done = {x[0] for x in flat[0] if x[2] == "d"}
    touched = {x[:2]: 0 for x in flat[0] if x[2] == "l"}
    for t in range(4):
        if ("k", t) not in done:
            del slot[("k", t)]
    q = [(t, j) for t in kv if t not in done for j in range(4)]
    free = [s for s in range(10) if s not in busy]
    issued = nt = 128 - len(q) + len(touched)
    nf = len(cfg.first)
    rate = (4 * 30 + cfg.cin - issued - sum(cfg.first)) / (31 - nf)

    def tgt(m):
        c = issued + sum(cfg.first[:m + 3]) + rate * max(0, m + 3 - nf)
        return min(128, max(int(c + 0.5), 4 * (m + 2) + cfg.cin))
    woq = [(("o", p), j) for p in range(8) for j in range(4)]
    low = (0, 1, 2, 3, 4, 5)
    want = {0: (8,), 1: (9,), 2: (7, 6), 3: (7, 6), 4: low, 5: low, 6: low, 7: low}
    main = []
    for m in range(-2, 32):
        for t in cons[8 + m - 1]:
            free.append(slot[t])
        target = 128 if m >= cfg.mfree else tgt(m)
        span = max(-(-tgt(mm) // 4) - mm for mm in range(m, m + 3))
        keep = max(2, (span + 1) // 2)
        allow = {"k": [2, 3, 1, 0][:keep], "v": [5, 4, 6, 7][:keep]}
        need = kv[m + 1] if -1 <= m < 31 else None
        out = []

        def alloc(t):
            if t not in slot:
                if any(x[0] not in slot for x in q[:[y[0] for y in q].index(t)]):
                    return False
                c = [s for s in ((5, 4, 3, 2, 1, 0) if t == ("v", 15) else allow[t[0]]) if s in free]
                if not c:
                    return False
                slot[t] = c[0]
                free.remove(c[0])
            return True
        for x in q:
            if x in touched:
                alloc(x[0])
        for x in list(q):
            if x in touched:
                continue
            if nt >= target and not any(y[0] == need and y not in touched for y in q):
                break
            if alloc(x[0]):
                q.remove(x)
                out.append(x + ("d",))
            elif m < cfg.lend:
                touched[x] = nt
                out.append(x + ("l",))
            else:
                break
            nt += 1
        for x in list(q):
            if x in touched and x[0] in slot and (x[0] == need or nt - touched[x] > cfg.cin):
                q.remove(x)
                out.append(x + ("h",))
        assert not any(x[0] == need for x in q)
        wocred = 1 if m >= cfg.wostart else 0
        for x in list(woq):
            if q and wocred < 1:
                break
            if not q and m < 31 and len(out) >= cfg.woend:
                break
            t = x[0]
            if t not in slot:
                c = [s for s in want[t[1]] if s in free and (not q or (s not in allow["k"] and s not in allow["v"]))]
                if not c:
                    continue
                slot[t] = c[0]
                free.remove(c[0])
            woq.remove(x)
            out.append(x + ("d",))
            wocred -= 1
        main.append(out)
    assert not q and not woq
    return cons, qvars, main, slot


def dma_waves(a, cfg, cons, qvars, main, slot):
    KG, VG, WG, XG, OG = 16, 18, 20, 24, 28
    a(f"""
    s_sub_u32 s4, s4, 4
    s_lshl_b32 s5, s4, 12
    v_lshrrev_b32 v1, 4, v0
    v_and_b32 v2, 15, v0
    v_lshlrev_b32 v4, 8, v1
    v_add_u32 v4, s5, v4
    v_lshlrev_b32 v3, 1, v1
    v_xor_b32 v3, v3, v2
    v_lshlrev_b32 v3, 4, v3
    v_lshlrev_b32 v7, 5, v4
    v_add_u32 v{WG}, v7, v3
    v_add_u32 v{WG + 1}, 0x7c00, v{WG}
    v_xor_b32 v{WG + 2}, 0x80, v{WG}
    v_add_u32 v{WG + 3}, 0x17400, v{WG + 2}
    v_add_u32 v{WG + 2}, 0xf800, v{WG + 2}
    v_add_u32 v{VG}, v4, v3
    v_xor_b32 v{VG + 1}, 0x80, v{VG}
    v_lshrrev_b32 v5, 3, v0
    v_and_b32 v6, 7, v0
    v_xor_b32 v6, v6, v1
    v_lshlrev_b32 v6, 4, v6
    v_lshlrev_b32 v5, 10, v5
    s_lshl_b32 s6, s4, 15
    v_add_u32 v5, s6, v5
    v_add_u32 v{XG}, v5, v6
    v_xor_b32 v{XG + 1}, 64, v{XG}
    v_add_u32 v{XG + 2}, 0x3800, v{XG}
    v_add_u32 v{XG + 3}, 0x5400, v{XG + 1}
    v_add_u32 v{XG + 1}, 0x1c00, v{XG + 1}
    s_lshl_b32 s64, s63, 8
    s_lshl_b32 s6, s62, 17
    s_mov_b32 s18, 0x20000
    s_mov_b32 s19, 0x20000
    s_mov_b32 s22, 0x400000
    s_mov_b32 s23, 0x20000
    s_waitcnt lgkmcnt(0)
    s_mov_b32 s20, s54
    s_mov_b32 s21, s55
    s_add_u32 s16, s48, s6
    s_addc_u32 s17, s49, 0
    """)
    setup2 = f"""
    v_xor_b32 v3, v1, v2
    s_and_b32 s6, s4, 1
    s_lshl_b32 s6, s6, 3
    v_xor_b32 v3, s6, v3
    v_lshlrev_b32 v3, 4, v3
    v_add_u32 v{KG}, v4, v3
    v_xor_b32 v{KG + 1}, 64, v{KG}
    s_lshl_b32 s3, s62, 5
    s_add_u32 s3, s3, s63
    s_lshl_b32 s3, s3, 18
    s_add_u32 s8, s50, s3
    s_addc_u32 s9, s51, 0
    s_mov_b32 s10, 0x40000
    s_mov_b32 s11, 0x20000
    s_add_u32 s12, s52, s3
    s_addc_u32 s13, s53, 0
    s_mov_b32 s14, 0x40000
    s_mov_b32 s15, 0x20000
    s_lshr_b32 s3, s4, 1
    s_lshl_b32 s3, s3, 15
    s_and_b32 s6, s4, 1
    s_lshl_b32 s6, s6, 13
    s_add_u32 s3, s3, s6
    v_lshlrev_b32 v4, 10, v1
    v_add_u32 v4, s3, v4
    v_lshlrev_b32 v3, 1, v1
    v_xor_b32 v3, v3, v2
    v_lshlrev_b32 v3, 4, v3
    v_add_u32 v{OG}, v4, v3
    v_add_u32 v{OG + 1}, {16384 - 1024}, v{OG}
    v_xor_b32 v{OG + 2}, 0x80, v{OG}
    v_add_u32 v{OG + 3}, {16384 + 4096 - 3072}, v{OG + 2}
    v_add_u32 v{OG + 2}, {4096 - 2048}, v{OG + 2}
    s_lshl_b32 s66, s60, 17
    s_lshl_b32 s3, s69, 8
    s_add_u32 s66, s66, s3
    s_lshl_b32 s67, s63, 17
    s_lshl_b32 s3, s62, 14
    s_add_u32 s67, s67, s3
    s_add_u32 s67, s67, s5
    v_lshlrev_b32 v10, 7, v0
    s_mov_b32 s24, s56
    s_mov_b32 s25, s57
    s_mov_b32 s26, 0x400000
    s_mov_b32 s27, 0x20000
    s_mov_b32 s32, s76
    s_mov_b32 s33, s77
    s_mov_b32 s34, 0x100000
    s_mov_b32 s35, 0x20000
    s_mul_i32 s80, s69, {QL}
    s_add_u32 s80, s80, s60
    s_add_u32 s80, s80, 8
    s_mul_i32 s80, s80, {FL}
    s_lshr_b32 s85, s60, 1
    s_mul_i32 s85, s85, {QL}
    s_and_b32 s6, s60, 1
    s_lshl_b32 s6, s6, 2
    s_add_u32 s85, s85, s6
    s_mul_i32 s85, s85, {FL}
    s_lshl_b32 s3, s69, 3
    s_add_u32 s3, s3, s60
    s_lshl_b32 s6, s62, 5
    s_add_u32 s3, s3, s6
    s_lshl_b32 s3, s3, 15
    s_add_u32 s3, s3, {PARTOFF}
    s_add_u32 s44, s58, s3
    s_addc_u32 s45, s59, 0
    s_mov_b32 s46, 0x8000
    s_mov_b32 s47, 0x20000
    s_mul_i32 s3, s62, {FSTR}
    s_add_u32 s3, s3, {FLAGOFF}
    s_add_u32 s40, s58, s3
    s_addc_u32 s41, s59, 0
    s_mov_b32 s42, {FSTR}
    s_mov_b32 s43, 0x20000
    s_lshl_b32 s3, s4, 10
    v_lshlrev_b32 v12, 4, v0
    v_add_u32 v12, s3, v12
    s_lshl_b32 s37, s62, 3
    s_add_u32 s37, s37, s60
    s_lshl_b32 s37, s37, 14
    s_lshl_b32 s3, s69, 8
    s_add_u32 s37, s37, s3
    s_lshl_b32 s3, s4, 6
    s_add_u32 s37, s37, s3
    v_lshlrev_b32 v11, 10, v2
    v_lshlrev_b32 v3, 4, v1
    v_add_u32 v11, v11, v3
    v_lshlrev_b32 v34, 4, v0
    v_add_u32 v34, s5, v34
    v_add_u32 v35, 0x10000, v34
    """
    vm, first, cur = [], [], [None]
    park, ppool, wrote, inlds = {}, [], [], []

    def issue(x, paced):
        tile, j, mode = x
        kind, t = tile
        if mode == "l":
            if paced and len(first) >= cfg.cin:
                a(f"s_waitcnt vmcnt({min(63, len(vm) - 1 - first[-cfg.cin])})")
            park[(tile, j)] = r = ppool.pop(0)
            first.append(len(vm))
            vm.append(("R", tile, j))
            g, srd = (KG + j // 2, "s[8:11]") if kind == "k" else (VG + j // 2, "s[12:15]")
            a(f"s_mov_b32 s6, {tileoff(cfg, t)}\nbuffer_load_dwordx4 {vr(r, 4)}, v{g}, {srd}, s6 offen offset:{j * 1024} nt")
            return
        if mode == "h":
            r = park.pop((tile, j))
            a(f"s_waitcnt vmcnt({min(63, len(vm) - 1 - vm.index(('R', tile, j)))})")
            off = slot[tile] * SLOT + j * 1024
            a(f"ds_write_b128 v{34 + off // 65536}, {vr(r, 4)} offset:{off % 65536}")
            wrote.append((tile, r))
            return
        if cur[0] != tile:
            cur[0] = tile
            a(f"s_add_u32 m0, s5, {slot[tile] * SLOT}")
            if kind in "kv":
                a(f"s_mov_b32 s7, {tileoff(cfg, t)}")
            elif kind == "w":
                a(f"s_add_u32 s7, s65, {t}\ns_and_b32 s7, s7, 7\ns_lshl_b32 s7, s7, 19\ns_add_u32 s7, s7, s64")
            elif kind == "x":
                a(f"s_add_u32 s7, s65, {t}\ns_and_b32 s7, s7, 7\ns_lshl_b32 s7, s7, 7")
            else:
                a(f"s_add_u32 s7, s69, {t // 2}\ns_and_b32 s7, s7, 3\ns_lshl_b32 s7, s7, 20\ns_add_u32 s7, s7, s66")
                if t % 2:
                    a("s_add_u32 s7, s7, 0x10000")
        if kind in "kv":
            if paced and len(first) >= cfg.cin:
                a(f"s_waitcnt vmcnt({min(63, len(vm) - 1 - first[-cfg.cin])})")
            first.append(len(vm))
        vm.append(tile)
        g, srd, fl = {"k": (KG + j // 2, "s[8:11]", "nt "), "v": (VG + j // 2, "s[12:15]", "nt "), "w": (WG + j, "s[20:23]", ""),
                      "x": (XG + j, "s[16:19]", ""), "o": (OG + j, "s[24:27]", "")}[kind]
        a(f"buffer_load_dwordx4 v{g}, {srd}, s7 offen offset:{j * 1024} {fl}lds")

    def phase(n, items, paced):
        needed = cons[n] + ([("o", 0), ("o", 1)] if n == 39 else [])
        if wrote:
            a("s_waitcnt lgkmcnt(0)")
            for t_, r_ in wrote:
                inlds.append(t_)
                ppool.append(r_)
            del wrote[:]
        assert all(vm.count(x) + inlds.count(x) == 4 for x in needed)
        last = max([i for i, x in enumerate(vm) if x in needed] + [0])
        if n == cfg.chk[0]:
            a("""
            s_lshl_b32 s68, s62, 4
            s_mov_b64 s[92:93], -1
            s_mov_b64 s[94:95], -1
            s_cmp_lg_u32 s4, 0
            s_cbranch_scc1 L_nomark
            s_load_dwordx4 s[92:95], s[78:79], s68
            L_nomark:
            """)
        if n == cfg.chk[1]:
            a("s_waitcnt lgkmcnt(0)\ns_and_b64 s[92:93], s[92:93], s[94:95]\ns_and_b32 s92, s92, s93\ns_cbranch_scc0 L_iwait\nL_iok:")
        a(f"; phase {n}: " + " ".join(f"{k}{t}" for k, t in needed) + " landed")
        a(f"s_waitcnt vmcnt({min(63, len(vm) - 1 - last)})\ns_barrier")
        for x in items:
            issue(x, paced)
        for k, m in enumerate(cfg.wopf):
            if n == 8 + m:
                a("; one row of wo into L2 (value unused)")
                a(f"s_mov_b64 exec, 0xff\nbuffer_load_dword v9, v10, s[24:27], s67 offen offset:{k * 1024}\ns_mov_b64 exec, -1")
                vm.append(("pf", k))

    assert all(p[0] == qvars[0][0] for p in qvars) and all(x[0][0] in "wx" for x in qvars[0][0])
    for x in qvars[0][0]:
        issue(x, False)
    vm0 = list(vm)
    a(setup2)
    a(f"s_and_b32 s3, s61, {len(qvars) - 1}")
    for vi in range(1, len(qvars)):
        a(f"s_cmp_eq_u32 s3, {vi}\ns_cbranch_scc1 L_qv{vi}")
    ends = []
    for vi, plan in enumerate(qvars):
        a(f"L_qv{vi}:")
        vm[:] = vm0
        del first[:]
        park.clear()
        ppool[:] = list(range(64, 256, 4))
        del wrote[:], inlds[:]
        cur[0] = None
        for n in range(6):
            phase(n, plan[n + 1], False)
        for n in (6, 7):
            phase(n, main[n - 6], False)
        k7 = max(i for i, x in enumerate(vm) if x == ("x", 7))
        ends.append((vm[k7:], [len(vm) - p for p in first if p > k7], dict(park), list(ppool), list(wrote)))
        if vi + 1 < len(qvars):
            a("s_branch L_qjoin")
    assert all(e == ends[0] for e in ends)
    a("L_qjoin:")
    cur[0] = None
    for m in range(32):
        phase(8 + m, main[2 + m], m < cfg.mfree)

    SEL = """
        v_and_b32 v3, 1, v2
        v_lshlrev_b32 v3, 4, v3
        v_mov_b32 v4, 0x3f80
        v_lshlrev_b32 v4, v3, v4
        v_lshrrev_b32 v5, 3, v2
        v_lshlrev_b32 v5, 1, v5
        v_bfe_u32 v6, v2, 1, 1
        v_add_u32 v5, v5, v6
        v_bfe_u32 v6, v2, 2, 1
        v_lshlrev_b32 v6, 1, v6
        v_sub_u32 v6, v1, v6
        v_lshlrev_b32 v6, 2, v6
        v_add_u32 v5, v5, v6
        """
    for k in range(8):
        SEL += f"v_cmp_eq_u32 vcc, {k}, v5\ns_nop 1\nv_cndmask_b32 v{80 + k}, 0, v4, vcc\n"
    a(f"""
    {SEL}
    v_mov_b32 v36, 1
    v_mov_b32 v37, 1
    v_mov_b32 v38, 1
    v_mov_b32 v39, 1
    v_lshlrev_b32 v8, 4, v0
    s_mul_i32 s3, s69, {FL}
    s_add_u32 s83, s85, s3
    """)
    for j in range(1, 4):
        a(f"s_add_u32 s3, s69, {j}\ns_and_b32 s3, s3, 3\ns_mul_i32 s3, s3, {FL}\ns_add_u32 s{92 + j}, s85, s3")
    OWNRD = f"; this workgroup's own share came through LDS\nv_add_u32 v13, {slot[('v', 15)] * SLOT}, v12\ns_lshl_b32 s82, 1, s60\n"
    for x in range(8):
        OWNRD += f"s_cmp_lg_u32 s60, {x}\ns_cbranch_scc1 L_ho{x}\nds_read_b128 {vr(32 + 4 * x, 4)}, v13\nL_ho{x}:\n"
    p1 = "\n".join(f"s_load_dword s{87 + j}, s[40:41], s{92 + j} glc" for j in range(1, 4))
    a(f"""
    s_mov_b32 s81, 0
    s_cmp_eq_u32 s4, 1
    s_cbranch_scc1 L_scout
    s_barrier
    s_cmp_lg_u32 s4, 0
    s_cbranch_scc1 L_h1ok
    s_mov_b64 exec, 0xff
    buffer_store_dwordx4 v[36:39], v8, s[40:43], s83 offen sc1
    s_mov_b64 exec, -1
    s_waitcnt vmcnt(1)
    s_branch L_h1go
    L_scout:
    {p1}
    s_barrier
    s_branch L_h1t
    L_h1:
    {p1}
    L_h1t:
    s_add_u32 s81, s81, 1
    s_cmp_ge_u32 s81, {SPIN}
    s_waitcnt lgkmcnt(0)
    s_cbranch_scc1 L_h1ok
    s_and_b32 s88, s88, s89
    s_and_b32 s88, s88, s90
    s_cbranch_scc0 L_h1
    L_h1ok:
    s_waitcnt vmcnt(0)
    L_h1go:
    s_barrier
    s_barrier
    s_mov_b32 s81, 0
    {OWNRD}
    L_hpoll:
    s_load_dwordx8 s[88:95], s[40:41], s80 glc
    s_add_u32 s81, s81, 1
    s_cmp_ge_u32 s81, {SPIN}
    s_cselect_b32 s86, 0xff, 0
    s_waitcnt lgkmcnt(0)
    s_or_b64 s[88:89], s[88:89], s[90:91]
    s_or_b64 s[92:93], s[92:93], s[94:95]
    s_or_b64 s[88:89], s[88:89], s[92:93]
    s_or_b32 s88, s88, s89
    s_and_b32 s88, s88, 0xff
    s_or_b32 s86, s86, s88
    s_andn2_b32 s86, s86, s82
    s_cbranch_scc0 L_hpoll
    s_or_b32 s82, s82, s86
    """)
    PB, SUM = 32, 64
    for x in range(8):
        a(f"""
        s_bitcmp1_b32 s86, {x}
        s_cbranch_scc0 L_hs{x}
        s_mov_b32 s7, {x * 4096}
        buffer_load_dwordx4 {vr(PB + 4 * x, 4)}, v12, s[44:47], s7 offen sc1
        L_hs{x}:
        """)
    a("s_cmp_eq_u32 s82, 0xff\ns_cbranch_scc0 L_hpoll\ns_waitcnt vmcnt(0)")
    for h in range(2):
        for x in range(8):
            d = vr(SUM + 4 * h, 4)
            a(f"{MF} {d}, {vr(80 + 4 * h, 4)}, {vr(PB + 4 * x, 4)}, {d if x else '0'}")
    a(f"v_cvt_pk_bf16_f32 v{SUM}, v{SUM}, v{SUM + 1}\nv_cvt_pk_bf16_f32 v{SUM + 1}, v{SUM + 2}, v{SUM + 3}\ns_nop 5")
    a(f"v_cvt_pk_bf16_f32 v{SUM + 2}, v{SUM + 4}, v{SUM + 5}\nv_cvt_pk_bf16_f32 v{SUM + 3}, v{SUM + 6}, v{SUM + 7}")
    a(f"""
    buffer_store_dwordx4 {vr(SUM, 4)}, v11, s[32:35], s37 offen nt
    s_endpgm
    L_iwait:
    v_lshlrev_b32 v8, 2, v0
    v_add_u32 v8, s68, v8
    s_mov_b32 s81, 0
    s_mov_b64 exec, 15
    L_ipoll:
    global_load_dword v9, v8, s[78:79] sc1
    s_add_u32 s81, s81, 1
    s_cmp_ge_u32 s81, {SPIN}
    s_waitcnt vmcnt(0)
    s_cbranch_scc1 L_ipok
    v_cmp_ne_u32 vcc, 0, v9
    s_nop 0
    s_cmp_eq_u32 vcc_lo, 15
    s_cbranch_scc0 L_ipoll
    L_ipok:
    s_mov_b64 exec, -1
    s_branch L_iok
    """)


def compute_waves(a, cfg, slot):
    KA, VA, XA = 16, 20, 28
    T0, T1, T2, T3, OOFF = 1, 2, 3, 30, 31
    ONES, NM, L, Q, O = 32, 36, 44, 52, 84
    S = [148, 180]
    F, NF = 212, 8
    XF = S[1]
    LB = [L, 248]
    KD = 10
    a(f"""
    L_attn:
    s_getpc_b64 s[40:41]
    L_pc:
    s_sub_u32 s40, s40, L_pc-{NAME}_kernel
    s_subb_u32 s41, s41, 0
    s_lshl_b32 s3, s61, 2
    s_add_u32 s3, s3, s4
    s_lshl_b32 s3, s3, 9
    v_and_b32 v1, 3, v0
    v_lshlrev_b32 v1, 7, v1
    v_add_u32 v1, s3, v1
    v_min_u32 v1, L_end-{NAME}_kernel, v1
    global_load_dword v247, v1, s[40:41]
    v_and_b32 v245, 15, v0
    v_lshrrev_b32 v246, 4, v0
    v_and_b32 v{T0}, 12, v245
    v_lshlrev_b32 v{T0}, 1, v{T0}
    v_and_b32 v{T1}, 3, v245
    v_or_b32 v{T0}, v{T0}, v{T1}
    v_lshlrev_b32 v{T0}, 8, v{T0}
    v_and_b32 v{T1}, 1, v246
    v_lshlrev_b32 v{T1}, 1, v{T1}
    v_lshrrev_b32 v{T2}, 1, v246
    v_or_b32 v{T1}, v{T1}, v{T2}
    v_lshlrev_b32 v{KD}, 4, v{T1}
    v_add_u32 v{KD}, v{T0}, v{KD}
    v_xor_b32 v{T1}, v{T1}, v245
    v_lshlrev_b32 v{T1}, 4, v{T1}
    v_add_u32 v{KA}, v{T0}, v{T1}
    v_xor_b32 v{KA + 1}, 64, v{KA}
    v_xor_b32 v{KA + 2}, 0x80, v{KA}
    v_xor_b32 v{KA + 3}, 0xc0, v{KA}
    v_lshrrev_b32 v{T0}, 2, v245
    v_lshlrev_b32 v{T1}, 3, v246
    v_add_u32 v{T1}, v{T1}, v{T0}
    v_lshlrev_b32 v{T1}, 8, v{T1}
    v_and_b32 v{T2}, 1, v246
    v_lshlrev_b32 v{T2}, 2, v{T2}
    v_or_b32 v{T0}, v{T0}, v{T2}
    v_lshlrev_b32 v{T0}, 5, v{T0}
    v_add_u32 v{T1}, v{T1}, v{T0}
    v_and_b32 v{T0}, 3, v0
    v_lshlrev_b32 v{T0}, 3, v{T0}
    v_add_u32 v{T1}, v{T1}, v{T0}
    v_add_u32 v{VA}, {4 * SLOT}, v{T1}
    """)
    for db in range(1, 8):
        a(f"v_xor_b32 v{VA + db}, {db * 32}, v{VA}")
    a(f"""
    v_lshrrev_b32 v{T0}, 1, v245
    v_xor_b32 v{T0}, v{T0}, v246
    v_lshlrev_b32 v{T0}, 4, v{T0}
    v_lshlrev_b32 v{T1}, 7, v245
    v_add_u32 v{T0}, v{T0}, v{T1}
    s_lshl_b32 s5, s4, 12
    s_add_u32 s3, s5, {6 * SLOT}
    v_add_u32 v{XA}, s3, v{T0}
    v_xor_b32 v{XA + 1}, 64, v{XA}
    v_lshlrev_b32 v{OOFF}, 4, v0
    s_mov_b32 s84, {CSCALE:#x}
    s_mov_b32 s85, {CSCALE:#x}
    s_mov_b32 s36, {THRESH:#x}
    """)
    a(f"""
    v_and_b32 v{T0}, 3, v0
    v_cmp_eq_u32 vcc, 0, v{T0}
    v_mov_b32 v{T1}, 0x3f803f80
    s_nop 0
    """)
    for i in range(4):
        a(f"v_cndmask_b32 v{ONES + i}, 0, v{T1}, vcc")
    a(f"""
    s_lshl_b32 s3, s4, 3
    s_add_u32 s3, s3, s60
    s_lshl_b32 s65, s62, 5
    s_add_u32 s3, s3, s65
    s_lshl_b32 s3, s3, 15
    s_lshl_b32 s68, s69, 13
    s_mov_b32 s30, 0x8000
    s_mov_b32 s31, 0x20000
    s_mul_i32 s66, s69, {QL * FL}
    s_mul_i32 s67, s4, {2 * FL}
    s_add_u32 s67, s67, s66
    s_add_u32 s67, s67, {8 * FL}
    s_lshl_b32 s7, s60, 2
    s_add_u32 s67, s67, s7
    s_lshl_b32 s6, s69, 3
    s_add_u32 s6, s6, s65
    s_lshl_b32 s6, s6, 15
    s_add_u32 s6, s6, {PARTOFF}
    s_lshl_b32 s37, s4, 16
    s_lshl_b32 s7, s60, 12
    s_add_u32 s37, s37, s7
    s_add_u32 s64, s37, 0x8000
    s_lshl_b32 s82, s62, 2
    s_add_u32 s82, s82, s69
    s_lshl_b32 s82, s82, 2
    s_mul_i32 s7, s62, {FSTR}
    s_add_u32 s7, s7, {FLAGOFF}
    s_mov_b32 s46, 0x40000
    s_mov_b32 s47, 0x20000
    s_mov_b32 s42, {FSTR}
    s_mov_b32 s43, 0x20000
    v_lshlrev_b32 v12, 4, v0
    v_mul_u32_u24 v11, {FL}, v0
    s_waitcnt lgkmcnt(0)
    s_add_u32 s28, s58, s3
    s_addc_u32 s29, s59, 0
    s_add_u32 s44, s58, s6
    s_addc_u32 s45, s59, 0
    s_add_u32 s40, s58, s7
    s_addc_u32 s41, s59, 0
    s_add_u32 s3, s65, s63
    s_lshl_b32 s3, s3, 18
    s_add_u32 s8, s50, s3
    s_addc_u32 s9, s51, 0
    s_mov_b32 s10, 0x40000
    s_mov_b32 s11, 0x20000
    s_lshl_b32 s86, s69, 1
    s_add_u32 s86, s86, s62
    s_xor_b32 s86, s86, s60
    s_and_b32 s86, s86, 7
    s_or_b32 s86, s86, s4
    """)

    def blk(base, u, qb, e):
        return base + ((u * 2 + qb) * 2 + e) * 4

    class Slot:
        def __init__(self, reads, m):
            self.reads, self.m = reads, m
            self.f = [[] for _ in m]
            self.pre = []
            self.bar = None
            self.rpos = None
    stream = []

    def flush():
        n = len(stream)
        out, pend, nxt = [], [], [0]
        gate = [min([k for k in range(n) if stream[k].bar] + [n])]

        def take(upto):
            while nxt[0] < min(upto + 1, gate[0]):
                pend.extend((nxt[0], r) for r in stream[nxt[0]].reads)
                nxt[0] += 1

        def emit(k):
            for _ in range(min(k, len(pend))):
                tag, r = pend.pop(0)
                a(r)
                out.append(tag)
            assert len(out) <= 15

        def barrier(k):
            assert gate[0] == k and nxt[0] == k and not pend
            if out:
                a("s_waitcnt lgkmcnt(0)")
                del out[:]
            a("s_barrier")
            gate[0] = min([x for x in range(k + 1, n) if stream[x].bar] + [n])
        take(1)
        emit(99)
        for i, s_ in enumerate(stream):
            for x in s_.pre:
                if x == "@BAR":
                    barrier(i)
                    take(i + 1)
                    emit(99)
                else:
                    a(x)
            lead = len(s_.m) - 4
            early = i + 2 < n and stream[i + 2].bar == "early"
            take(i + 2)
            for k, m in enumerate(s_.m):
                if k == lead:
                    assert nxt[0] > i and not any(t <= i for t, _ in pend)
                    if any(x <= i for x in out):
                        keep = [x for x in out if x > i]
                        a(f"s_waitcnt lgkmcnt({len(keep)})")
                        out[:] = keep
                if early and k == lead + 2:
                    barrier(i + 2)
                    take(i + 3)
                    emit(max(0, len(pend) - 6))
                    share = -(-len(pend) // 6)
                a(m)
                if k >= lead:
                    g = k - lead
                    if early:
                        emit(share if g >= 2 else 0)
                    elif s_.rpos and len(pend) <= len([p for p in s_.rpos if p >= g]):
                        emit(s_.rpos.count(g))
                    else:
                        emit(-(-len(pend) // (4 - g)))
                for x in s_.f[k]:
                    a(x)
        assert not out and not pend
        del stream[:]

    def quad(acc_, fr, b_, q0, c0):
        m = []
        for q, k in ((q0, 0), (q0, 1), (1 - q0, 1), (1 - q0, 0)):
            d = vr(acc_(q), 4)
            c = c0(q) if (len(m) % 2 == 0 and c0) else d
            m.append(f"{MF} {d}, {vr(fr[k], 4)}, {vr(b_(k, q), 4)}, {c}")
        return m

    def add(slots, bar, pre=(), note=""):
        slots[0].bar = bar
        slots[0].pre = list(pre) + [f"; ---- {note}"] + slots[0].pre
        stream.extend(slots)
        return slots

    fcnt, vwin = [0], [4]

    def nextf():
        fcnt[0] += 1
        return F + 4 * ((fcnt[0] - 1) % NF)

    def trreads(ar, off, dst):
        assert 0 <= off < 65536 - 1024
        return [f"ds_read_b64_tr_b16 {vr(dst, 2)}, v{ar} offset:{off}", f"ds_read_b64_tr_b16 {vr(dst + 2, 2)}, v{ar} offset:{off + 1024}"]

    for j in range(8):
        pre = []
        if j == cfg.clr[0]:
            pre += lines("s_cmp_eq_u32 s86, 0\ns_cbranch_scc1 L_clear\nL_cleared:")
        if j == cfg.clr[1]:
            pre += lines("s_cmp_eq_u32 s86, 0\ns_cbranch_scc1 L_mark\nL_marked:")
        ws_, xs_ = slot[("w", j)], slot[("x", j)]
        sl_, xf = [], XF + 16 * (j % 2)
        for db in range(8):
            fr = [nextf(), nextf()]
            r = [x for ks in range(2) for x in trreads(VA + db, (ws_ - 4) * SLOT + ks * 8192, fr[ks])]
            if db == 0:
                xr = lambda ks, qb: f"ds_read_b128 {vr(xf + 8 * ks + 4 * qb, 4)}, v{XA + ks} offset:{(xs_ - 6) * SLOT + qb * 2048}"
                r = [xr(0, 0), xr(1, 0), xr(1, 1), xr(0, 1)] + r
            sl_.append(Slot(r, quad(lambda q: blk(O, db // 2, q, db % 2), fr, lambda k, q: xf + 8 * k + 4 * q, db % 2,
                                    (lambda q: "0") if j == 0 else None)))
        add(sl_, "late" if j == 0 else "early", pre + (["@BAR"] if j == 0 else []), f"Q projection, step {j}")
    qcv = ["; Q * log2(e)/sqrt(128) -> bf16 operand fragments"]
    for fr in range(8):
        qcv += [f"v_pk_mul_f32 {vr(O + 8 * fr + 2 * i, 2)}, {vr(O + 8 * fr + 2 * i, 2)}, s[84:85]" for i in range(4)]
        qcv += [f"v_cvt_pk_bf16_f32 v{Q + 4 * fr + i}, v{O + 8 * fr + 2 * i}, v{O + 8 * fr + 2 * i + 1}" for i in range(4)]
        if fr > 0:
            p = Q + 4 * (fr - 1)
            qcv += [f"v_permlane16_swap_b32 v{p}, v{p + 2}", f"v_permlane16_swap_b32 v{p + 1}, v{p + 3}"]
    p = Q + 28
    qcv += ["s_nop 1", f"v_permlane16_swap_b32 v{p}, v{p + 2}", f"v_permlane16_swap_b32 v{p + 1}, v{p + 3}"]

    def qk(tile, sb, first=False):
        sl, out = slot[("k", tile)], []
        for kb in range(4):
            ks, e = kb // 2, kb % 2
            for g in range(2):
                s0 = 2 * (g ^ (kb % 2))
                fr = [nextf(), nextf()]
                rd = [f"ds_read_b128 {vr(fr[k], 4)}, v{KA + s0 + k} offset:{sl * SLOT + ks * 8192 + e * 1024}" for k in range(2)]
                c0 = None if g else ((lambda q: "0") if first else (lambda q: vr(NM + 4 * q, 4)))
                out.append(Slot(rd, quad(lambda q: blk(sb, ks, q, e), fr, lambda k, q: Q + 4 * (2 * (s0 + k) + q), g, c0)))
                out[-1].rpos = [1, 3]
        return out

    def maxchain(sb):
        out = [[], []]
        for qb, t in ((0, T0), (1, T1)):
            regs = [blk(sb, ks, qb, 0) + i for ks in range(2) for i in range(8)]
            out[qb].append(f"v_max3_f32 v{t}, v{regs[0]}, v{regs[1]}, v{regs[2]}")
            for i in range(3, 15, 2):
                out[qb].append(f"v_max3_f32 v{t}, v{t}, v{regs[i]}, v{regs[i + 1]}")
            out[qb].append(f"v_max_f32 v{t}, v{t}, v{regs[15]}")
        return [x for p in zip(*out) for x in p]

    def rescale(sb, first, nb=None, lo=None):
        o = lines(f"""
        v_mov_b32 v{T2}, v{T0}
        v_mov_b32 v{T3}, v{T1}
        s_nop 1
        v_permlane32_swap_b32 v{T0}, v{T2}
        v_permlane32_swap_b32 v{T1}, v{T3}
        v_max_f32 v{T0}, v{T0}, v{T2}
        v_max_f32 v{T1}, v{T1}, v{T3}
        v_mov_b32 v{T2}, v{T0}
        v_mov_b32 v{T3}, v{T1}
        s_nop 1
        v_permlane16_swap_b32 v{T0}, v{T2}
        v_permlane16_swap_b32 v{T1}, v{T3}
        """)
        if first:
            o += [f"v_max_f32 v{T0}, v{T0}, v{T2}", f"v_max_f32 v{T1}, v{T1}, v{T3}"]
        else:
            o += [f"v_max3_f32 v{T0}, v{T0}, v{T2}, 0", f"v_max3_f32 v{T1}, v{T1}, v{T3}, 0",
                  f"v_exp_f32 v{T2}, -v{T0}", f"v_exp_f32 v{T3}, -v{T1}"]
        for qb, t in ((0, T0), (1, T1)):
            for i in range(4):
                r = NM + 4 * qb + i
                o.append(f"v_sub_f32 v{r}, {'0' if first else f'v{r}'}, v{t}")
        for b_ in (sb, nb):
            for ks in range(2 if b_ else 0):
                for qb, t in ((0, T0), (1, T1)):
                    o += [f"v_sub_f32 v{blk(b_, ks, qb, 0) + i}, v{blk(b_, ks, qb, 0) + i}, v{t}" for i in range(8)]
        if not first:
            for qb, t in ((0, T2), (1, T3)):
                o += [f"v_mul_f32 v{lo + 4 * qb + i}, v{t}, v{lo + 4 * qb + i}" for i in range(4)]
                for u in range(4):
                    o += [f"v_mul_f32 v{blk(O, u, qb, 0) + i}, v{t}, v{blk(O, u, qb, 0) + i}" for i in range(8)]
        return o

    exps = lambda b: [f"v_exp_f32 v{b + i}, v{b + i}" for i in range(32)]
    cvto = lambda src, dst: [f"v_cvt_pk_bf16_f32 v{dst + 8 * (g // 4) + g % 4}, v{src + 2 * g}, v{src + 2 * g + 1}" for g in range(16)]

    def ones(src, t):
        o = []
        for q, ks in ((0, 0), (0, 1), (1, 0), (1, 1)):
            d = vr(LB[t % 2] + 4 * q, 4)
            c = d if len(o) % 2 else ("0" if t == 0 else vr(LB[(t - 1) % 2] + 4 * q, 4))
            o.append(f"{MF} {d}, {vr(ONES, 4)}, {vr(blk(src, ks, q, 0), 4)}, {c}")
        return o

    add(qk(0, S[0], first=True), "early", qcv, "scores of the first key tile")
    carry = ["; row maxima of the first tile become the softmax reference", "s_nop 7"] + maxchain(S[0]) + rescale(S[0], True)
    for t in range(16):
        cur, nxt = S[t % 2], S[(t + 1) % 2]
        ex, cv = exps(cur), cvto(cur, cur)
        chk = [f"v_max_f32 v{T0}, v{LB[t % 2]}, v{LB[t % 2] + 4}", f"v_cmp_lt_f32 vcc, s36, v{T0}"]
        br = ["; a row sum above 2^18: redo this tile against the true maxima before its weights are used",
              f"s_cbranch_vccnz L_rare{t}", f"L_back{t}:"]
        sl = slot[("v", t)]
        if t < 15:
            A_ = add(qk(t + 1, nxt), "early", carry, f"step {t}: scores(t+1) - reference; exp and row sums of tile t")
            k = c = 0
            chain = [(i, h) for i in range(6) for h in (0, 2)]
            other = [(i, h) for i in range(6) for h in (1, 3) if (h == 1 or i % 2) and (i, h) != (5, 3)]
            ne = {g: 1 for g in chain}
            rest = 32 - len(chain)
            for n_, g in enumerate(other):
                ne[g] = (rest * (n_ + 1) + len(other) - 1) // len(other) - (rest * n_ + len(other) - 1) // len(other)
            for i in range(6):
                for h in range(4):
                    if h == 1 or (h == 3 and i % 2):
                        lim = c + 3
                        while 2 * c + 2 <= k and c < min(14, lim):
                            A_[i].f[h].append(cv[c])
                            c += 1
                    for _ in range(ne.get((i, h), 0)):
                        A_[i].f[h].append(ex[k])
                        k += 1
            assert k == 32 and c == 14
            A_[6].m = ones(cur, t) + A_[6].m
            A_[6].f = [cv[14:], [], [], []] + A_[6].f
            carry = []
            if t > 0:
                A_[7].f[0].append(chk[0])
                A_[7].f[1].append(chk[1])
                carry = br
        else:
            carry += ["; last tile: final row sums first, then O and this tile's weights are normalised before the last P.V"]
            carry += ex[31:] + cvto(cur, nxt) + ones(nxt, t)
            if sl < 4:
                carry += [f"v_subrev_u32 v{VA + db}, {4 * SLOT}, v{VA + db}" for db in range(8)]
                vwin[0] = 0
            else:
                carry += ["s_nop 7"]
            carry += chk + ["s_nop 1"] + br + [f"v_rcp_f32 v{T1}, v{LB[1]}", f"v_rcp_f32 v{T2}, v{LB[1] + 4}", "s_nop 0"]
            pk = lambda r, qb: f"v_pk_mul_f32 {vr(r, 2)}, {vr(r, 2)}, {vr(T1, 2)} {['op_sel_hi:[1,0]', 'op_sel:[0,1]'][qb]}"
            carry += [pk(blk(O, u, qb, 0) + i, qb) for u in range(4) for qb in range(2) for i in range(0, 8, 2)]
            carry += [pk(blk(cur, ks, qb, 0) + i, qb) for ks in range(2) for qb in range(2) for i in range(0, 8, 2)]
            carry += ["@BAR"] + cv
        B_ = []
        for db in range(8):
            fr = [nextf(), nextf()]
            m = quad(lambda q: blk(O, db // 2, q, db % 2), fr, lambda k, q: blk(cur, k, q, 0), 1 - db % 2, (lambda q: "0") if t == 0 else None)
            B_.append(Slot([x for ks in range(2) for x in trreads(VA + db, (sl - vwin[0]) * SLOT + ks * 8192, fr[ks])], m))
        if t == 15:
            B15 = add(B_, "late", carry, "last P.V, O -> bf16 fragments -> d_ws")
            break
        add(B_, "early", carry, f"step {t}: P.V")
        carry = []
        if t == 14:
            for k, (i, h) in enumerate([(i, h) for i in range(8) for h in range(4)][1:]):
                B_[i].f[h].append(exps(nxt)[k])

    ACC, WA, wins = S[0], 4, (0, 4)
    acc = lambda nb, qb: ACC + 4 * (2 * nb + qb)
    ofr = {(0, u, qb): blk(O, u, qb, 0) for u in range(4) for qb in range(2)}
    pool = list(range(Q, Q + 32, 4)) + [O + 8 * i + 4 for i in range(8)] + list(range(32, 52, 4)) + [244, 248, 252]
    for j in range(1, 4):
        for u in range(4):
            for qb in range(2):
                ofr[(j, u, qb)] = pool.pop(0)
    assert all(slot[("o", k)] >= 6 for k in range(4)) and all(slot[("o", k)] < 6 for k in range(4, 8))
    for db in range(8):
        B15[max(0, db - 1)].f[1].append(f"v_add_u32 v{VA + db}, {(6 - vwin[0]) * SLOT}, v{VA + db}")

    def oslot(j, c, nb, ar, w0, q0):
        fr = [nextf(), nextf()]
        rd = [x for k in range(2) for x in trreads(ar, (slot[("o", 2 * j + c)] - w0) * SLOT + k * 8192, fr[k])]
        return Slot(rd, quad(lambda q: acc(nb, q), fr, lambda k, q: ofr[(j, 2 * c + k, q)], q0, (lambda q: "0") if j == 0 and c == 0 else None))

    kouter = lambda j: [oslot(j, c, nb, VA + nb, 6, nb % 2) for c in range(2) for nb in range(8)]
    OWN = add(kouter(0), None, (), "output projection: own head")
    both = B15 + OWN
    for u in range(4):
        ins = []
        for qb in range(2):
            b, fi = blk(O, u, qb, 0), 2 * u + qb
            ins += [f"v_cvt_pk_bf16_f32 v{b + i}, v{b + 2 * i}, v{b + 2 * i + 1}" for i in range(4)]
            if fi == 4:
                ins.append(f"v_add_u32 v{OOFF}, 4096, v{OOFF}")
            ins.append(f"buffer_store_dwordx4 {vr(b, 4)}, v{OOFF}, s[28:31], s68 offen offset:{(fi % 4) * 1024} sc1")
        share = [1, 2, 1, 2, 1, 2, 1, 2] if u < 3 else [5, 6]
        for k, n_ in enumerate(share):
            both[2 * u + 3 + k // 4].f[k % 4] += ins[:n_]
            ins = ins[n_:]
        assert not ins
    OWN[cfg.pub].f[3] += ["s_waitcnt vmcnt(0)", "s_barrier"]
    flush()
    a("; released once the other three heads' O is in d_ws\ns_barrier")
    oloads = []
    for j in range(1, 4):
        for fi in range(8):
            pre = {0: [f"s_add_u32 s7, s69, {j}", "s_and_b32 s7, s7, 3", "s_lshl_b32 s7, s7, 13"], 4: ["s_add_u32 s7, s7, 4096"]}.get(fi, [])
            oloads.append(pre + [f"buffer_load_dwordx4 {vr(ofr[(j, fi // 2, fi % 2)], 4)}, v12, s[28:31], s7 offen offset:{(fi % 4) * 1024} sc1"])
    for x in oloads[:cfg.nup]:
        a("\n".join(x))
    K0, NP, parts = 16, 4, [(2, 0), (2, 1), (3, 0), (3, 1)]
    R = kouter(1)
    at = []
    for k in range(24 - cfg.nup):
        at.append((k * 26) // (24 - cfg.nup))
    before = lambda sl_: cfg.nup + sum(1 for v in at if v < 2 * sl_)
    for nb in range(8):
        R[K0 + NP * nb - 3].f[1] += [f"v_subrev_u32 v{WA + 2 * (nb % 2) + wi}, {(6 - w0) * SLOT}, v{VA + nb}" for wi, w0 in enumerate(wins)]
        for j, c in (parts if nb % 2 == 0 else parts[::-1]):
            wi = 0 if slot[("o", 2 * j + c)] < 4 else 1
            R.append(oslot(j, c, nb, WA + 2 * (nb % 2) + wi, wins[wi], len(R) % 2))
            if nb == 0:
                n_ = before(len(R) - 1) - 8 * (j - 1) - 4 * (c + 1)
                assert n_ >= 0
                R[-1].pre.append(f"s_waitcnt vmcnt({n_})")
    for k, x in enumerate(oloads[cfg.nup:]):
        R[at[k] // 2].f[1 + 2 * (at[k] % 2)] += x
    for c in range(K0 // 8):
        R[8 * c].pre.append(f"s_waitcnt vmcnt({before(8 * c) - 4 * (c + 1)})")

    ownw = []
    R[14].f[1] += [f"v_add_u32 v13, {slot[('v', 15)] * SLOT}, v12", "s_lshl_b32 s87, s4, 1", "s_sub_u32 s87, s60, s87"]

    def pack(np_):
        o = []
        for qb in range(2):
            t = O + 8 * (2 * (np_ % 2) + qb)
            for e in range(2):
                r = acc(2 * np_ + e, qb)
                o += [f"v_cvt_pk_bf16_f32 v{t + 2 * e}, v{r}, v{r + 1}", f"v_cvt_pk_bf16_f32 v{t + 2 * e + 1}, v{r + 2}, v{r + 3}"]
            st = f"buffer_store_dwordx4 {vr(t, 4)}, v12, s[44:47], s{37 if qb == 0 else 64} offen offset:{np_ * 1024} sc1"
            st = f"s_cmp_eq_u32 s87, {qb}\ns_cbranch_scc1 L_po{np_}{qb}\n{st}\nL_pb{np_}{qb}:"
            ownw.append(f"L_po{np_}{qb}:\nds_write_b128 v13, {vr(t, 4)} offset:{np_ * 1024}\ns_branch L_pb{np_}{qb}")
            o.append(st)
        return o
    for np_ in range(3):
        for k, x in enumerate(pack(np_)):
            g = [0, 1, 2, 4, 5, 6, 8, 9, 10, 13][k]
            R[K0 + 2 * NP * (np_ + 1) + 1 + g // 4].f[g % 4].append(x)
    add(R, None, (), "output projection: the other three heads, partial sums -> d_ws")
    flush()
    a("s_lshl_b32 s3, 1, s60\nv_mov_b32 v4, s3\ns_nop 5")
    a("\n".join(pack(3)))
    a(f"""
    s_waitcnt lgkmcnt(0)
    s_barrier
    s_waitcnt vmcnt(0)
    s_mov_b64 exec, 3
    buffer_store_dword v4, v11, s[40:43], s67 offen sc1
    s_endpgm
    {chr(10).join(ownw)}
    L_clear:
    v_mov_b32 v248, 0
    v_mov_b32 v249, 0
    v_mov_b32 v250, 0
    v_mov_b32 v251, 0
    v_lshrrev_b32 v244, 3, v0
    v_mul_u32_u24 v244, {FL}, v244
    v_and_b32 v245, 7, v0
    v_lshlrev_b32 v245, 4, v245
    v_add_u32 v244, v244, v245
    s_add_u32 s3, s66, {8 * FL}
    buffer_store_dwordx4 v[248:251], v244, s[40:43], s66 offen sc1
    buffer_store_dwordx4 v[248:251], v244, s[40:43], s3 offen sc1
    s_branch L_cleared
    L_mark:
    v_mov_b32 v244, s82
    v_mov_b32 v245, 1
    s_mov_b64 exec, 1
    s_waitcnt vmcnt(0)
    global_store_dword v244, v245, s[78:79] sc1
    s_mov_b64 exec, -1
    s_branch L_marked
    """)
    for t in range(1, 16):
        a(f"L_rare{t}:\ns_mov_b32 s16, {tileoff(cfg, t)}\ns_call_b64 s[38:39], L_redo{2 if t == 15 else t % 2}\ns_branch L_back{t}")
    for v in range(3):
        t = (2, 1, 15)[v]
        cur, nxt = S[t % 2], S[(t + 1) % 2]
        a(f"L_redo{v}:\ns_add_u32 s17, s16, 8192")
        for kb in range(4):
            ks, e = kb // 2, kb % 2
            for s_ in range(4):
                a(f"buffer_load_dwordx4 {vr(F + 16 + 4 * s_, 4)}, v{KD}, s[8:11], s{16 + ks} offen offset:{e * 1024 + s_ * 64}")
            a("s_waitcnt vmcnt(0)")
            for q in range(2):
                for s_ in range(4):
                    d = vr(blk(cur, ks, q, e), 4)
                    a(f"{MF} {d}, {vr(F + 16 + 4 * s_, 4)}, {vr(Q + 4 * (2 * s_ + q), 4)}, {d if s_ else vr(NM + 4 * q, 4)}")
        a("s_nop 7")
        a("\n".join(maxchain(cur) + rescale(cur, False, nxt if t < 15 else None, LB[(t - 1) % 2])))
        dst = cur if t < 15 else nxt
        a("\n".join(exps(cur) + cvto(cur, dst) + ones(dst, t)))
        a("s_nop 7\ns_setpc_b64 s[38:39]")


NOTES = """;
;   1. the four heads {x + 8c} of a batch exchange O; workgroup c multiplies all four by wo[:, 128c .. 128c+127]
"""


def build(cfg):
    a = Asm()
    cons, qvars, main, slot = schedule(cfg)
    a("""
    s_cmp_ge_u32 s2, 256
    s_cbranch_scc1 L_end
    s_load_dwordx8 s[48:55], s[0:1], 0
    s_load_dwordx2 s[56:57], s[0:1], 32
    s_load_dwordx2 s[58:59], s[0:1], 56
    s_load_dwordx4 s[76:79], s[0:1], 40
    v_lshrrev_b32 v1, 6, v0
    v_and_b32 v0, 63, v0
    v_readfirstlane_b32 s4, v1
    s_and_b32 s60, s2, 7
    s_lshr_b32 s61, s2, 3
    s_and_b32 s62, s61, 7
    s_lshr_b32 s69, s61, 3
    s_lshl_b32 s65, s69, 1
    s_add_u32 s65, s65, s62
    s_lshl_b32 s63, s69, 3
    s_add_u32 s63, s63, s60
    s_cmp_lt_u32 s4, 4
    s_cbranch_scc1 L_attn
    """)
    dma_waves(a, cfg, cons, qvars, main, slot)
    compute_waves(a, cfg, slot)
    a("L_end:\ns_endpgm")
    name = NAME + "_kernel"
    return (HEADER + "; @launch grid=(256,1,1) block=(512,1,1) lds=163840\n" + NOTES
            + '.amdgcn_target "amdgcn-amd-amdhsa--gfx950"\n.text\n'
            + f".globl {name}\n.p2align 8\n.type {name},@function\n{name}:\n"
            + a.text() + '.section .rodata,"a"\n.p2align 6\n' + kd(name, 256, 256))


def mk(name, **kw):
    c = Cfg()
    for k, v in kw.items():
        assert hasattr(c, k), k
        setattr(c, k, v)
    open(name, "w").write(build(c))


if __name__ == "__main__":
    mk(sys.argv[1] if len(sys.argv) > 1 else "final.s")
```

```python
import sys, struct, math
from common import NAME, HEADER, kd

SLOT = 16384
MF = "v_mfma_f32_16x16x32_bf16"
SPIN = 1 << 21
FLAGOFF, PARTOFF = 0x1000000, 0x2000000
FL, QL = 256, 16
FSTR = 4 * QL * FL


class Cfg:
    qplan = [["pp", "pkkkkl", "p", "p", "p", "p", "p"], ["pp", "p", "p", "pk", "p", "pkkkl", "p"]]
    cin = 5
    first = (4, 4, 4, 3)
    lend = 8
    mfree = 26
    wostart, woend = 6, 8
    wopf = (0, 1, 2, 3)
    tm = (4, 2, 8, 1)
    clr, chk = (0, 4), (16, 22)
    pub, nup = 9, 12
    orc = 2


def tileoff(cfg, t):
    x = 0
    for k, m in enumerate(cfg.tm):
        x ^= m * ((t >> k) & 1)
    return x * SLOT


def f32bits(x):
    return struct.unpack("<I", struct.pack("<f", x))[0]


CSCALE = f32bits(math.log2(math.e) / math.sqrt(128.0))
THRESH = f32bits(2.0 ** 18)


def vr(b, n):
    return f"v[{b}:{b + n - 1}]"


def lines(txt):
    return [x.strip() for x in txt.split("\n") if x.strip()]


class Asm:
    def __init__(self):
        self.l = []

    def __call__(self, s):
        for x in lines(s):
            self.l.append(("" if x.endswith(":") else "    ") + x)

    def text(self):
        return "\n".join(self.l) + "\n"


def schedule(cfg):
    cons = [[("w", t), ("x", t)] for t in range(8)]
    kv = [("k", 0)]
    for t in range(16):
        if t < 15:
            kv.append(("k", t + 1))
        kv.append(("v", t))
    cons += [[t] for t in kv]
    slot = {}
    for t in range(8):
        slot[("w", t)] = 4 + t % 3
        slot[("x", t)] = 7 + t % 3
    for t in range(4):
        slot[("k", t)] = t
    qvars = []
    for var in cfg.qplan:
        nx, busy, plan = {"p": 0, "k": 0, "l": 0}, {}, []
        for n, txt in enumerate(var, -1):
            if n >= 1:
                for t in cons[n - 1]:
                    del busy[slot[t]]
            out = []
            for c in txt:
                if c == "l":
                    out += [(("v", nx[c]), j, "l") for j in range(4)]
                    nx[c] += 1
                    continue
                tiles = [("w", nx[c]), ("x", nx[c])] if c == "p" else [(c, nx[c])]
                nx[c] += 1
                for t in tiles:
                    assert slot[t] not in busy
                    busy[slot[t]] = t
                    out += [(t, j, "d") for j in range(4)]
            plan.append(out)
            assert all(busy.get(slot[t]) == t for t in cons[n + 1])
        assert nx["p"] == 8
        qvars.append(plan)
    flat = [sorted(x for p in v for x in p) for v in qvars]
    assert all(f == flat[0] for f in flat)
    done = {x[0] for x in flat[0] if x[2] == "d"}
    touched = {x[:2]: 0 for x in flat[0] if x[2] == "l"}
    for t in range(4):
        if ("k", t) not in done:
            del slot[("k", t)]
    q = [(t, j) for t in kv if t not in done for j in range(4)]
    free = [s for s in range(10) if s not in busy]
    issued = nt = 128 - len(q) + len(touched)
    nf = len(cfg.first)
    rate = (4 * 30 + cfg.cin - issued - sum(cfg.first)) / (31 - nf)

    def tgt(m):
        c = issued + sum(cfg.first[:m + 3]) + rate * max(0, m + 3 - nf)
        return min(128, max(int(c + 0.5), 4 * (m + 2) + cfg.cin))
    woq = [(("o", p), j) for p in range(8) for j in range(4)]
    low = (0, 1, 2, 3, 4, 5)
    want = {0: (8,), 1: (9,), 2: (7, 6), 3: (7, 6), 4: low, 5: low, 6: low, 7: low}
    main = []
    for m in range(-2, 32):
        for t in cons[8 + m - 1]:
            free.append(slot[t])
        target = 128 if m >= cfg.mfree else tgt(m)
        span = max(-(-tgt(mm) // 4) - mm for mm in range(m, m + 3))
        keep = max(2, (span + 1) // 2)
        allow = {"k": [2, 3, 1, 0][:keep], "v": [5, 4, 6, 7][:keep]}
        need = kv[m + 1] if -1 <= m < 31 else None
        out = []

        def alloc(t):
            if t not in slot:
                if any(x[0] not in slot for x in q[:[y[0] for y in q].index(t)]):
                    return False
                c = [s for s in ((5, 4, 3, 2, 1, 0) if t == ("v", 15) else allow[t[0]]) if s in free]
                if not c:
                    return False
                slot[t] = c[0]
                free.remove(c[0])
            return True
        for x in q:
            if x in touched:
                alloc(x[0])
        for x in list(q):
            if x in touched:
                continue
            if nt >= target and not any(y[0] == need and y not in touched for y in q):
                break
            if alloc(x[0]):
                q.remove(x)
                out.append(x + ("d",))
            elif m < cfg.lend:
                touched[x] = nt
                out.append(x + ("l",))
            else:
                break
            nt += 1
        for x in list(q):
            if x in touched and x[0] in slot and (x[0] == need or nt - touched[x] > cfg.cin):
                q.remove(x)
                out.append(x + ("h",))
        assert not any(x[0] == need for x in q)
        wocred = 1 if m >= cfg.wostart else 0
        for x in list(woq):
            if q and wocred < 1:
                break
            if not q and m < 31 and len(out) >= cfg.woend:
                break
            t = x[0]
            if t not in slot:
                c = [s for s in want[t[1]] if s in free and (not q or (s not in allow["k"] and s not in allow["v"]))]
                if not c:
                    continue
                slot[t] = c[0]
                free.remove(c[0])
            woq.remove(x)
            out.append(x + ("d",))
            wocred -= 1
        main.append(out)
    assert not q and not woq
    return cons, qvars, main, slot


def dma_waves(a, cfg, cons, qvars, main, slot):
    KG, VG, WG, XG, OG = 16, 18, 20, 24, 28
    a(f"""
    s_sub_u32 s4, s4, 4
    s_lshl_b32 s5, s4, 12
    v_lshrrev_b32 v1, 4, v0
    v_and_b32 v2, 15, v0
    v_lshlrev_b32 v4, 8, v1
    v_add_u32 v4, s5, v4
    v_lshlrev_b32 v3, 1, v1
    v_xor_b32 v3, v3, v2
    v_lshlrev_b32 v3, 4, v3
    v_lshlrev_b32 v7, 5, v4
    v_add_u32 v{WG}, v7, v3
    v_add_u32 v{WG + 1}, 0x7c00, v{WG}
    v_xor_b32 v{WG + 2}, 0x80, v{WG}
    v_add_u32 v{WG + 3}, 0x17400, v{WG + 2}
    v_add_u32 v{WG + 2}, 0xf800, v{WG + 2}
    v_add_u32 v{VG}, v4, v3
    v_xor_b32 v{VG + 1}, 0x80, v{VG}
    v_lshrrev_b32 v5, 3, v0
    v_and_b32 v6, 7, v0
    v_xor_b32 v6, v6, v1
    v_lshlrev_b32 v6, 4, v6
    v_lshlrev_b32 v5, 10, v5
    s_lshl_b32 s6, s4, 15
    v_add_u32 v5, s6, v5
    v_add_u32 v{XG}, v5, v6
    v_xor_b32 v{XG + 1}, 64, v{XG}
    v_add_u32 v{XG + 2}, 0x3800, v{XG}
    v_add_u32 v{XG + 3}, 0x5400, v{XG + 1}
    v_add_u32 v{XG + 1}, 0x1c00, v{XG + 1}
    s_lshl_b32 s64, s63, 8
    s_lshl_b32 s6, s62, 17
    s_mov_b32 s18, 0x20000
    s_mov_b32 s19, 0x20000
    s_mov_b32 s22, 0x400000
    s_mov_b32 s23, 0x20000
    s_waitcnt lgkmcnt(0)
    s_mov_b32 s20, s54
    s_mov_b32 s21, s55
    s_add_u32 s16, s48, s6
    s_addc_u32 s17, s49, 0
    """)
    setup2 = f"""
    v_xor_b32 v3, v1, v2
    s_and_b32 s6, s4, 1
    s_lshl_b32 s6, s6, 3
    v_xor_b32 v3, s6, v3
    v_lshlrev_b32 v3, 4, v3
    v_add_u32 v{KG}, v4, v3
    v_xor_b32 v{KG + 1}, 64, v{KG}
    s_lshl_b32 s3, s62, 5
    s_add_u32 s3, s3, s63
    s_lshl_b32 s3, s3, 18
    s_add_u32 s8, s50, s3
    s_addc_u32 s9, s51, 0
    s_mov_b32 s10, 0x40000
    s_mov_b32 s11, 0x20000
    s_add_u32 s12, s52, s3
    s_addc_u32 s13, s53, 0
    s_mov_b32 s14, 0x40000
    s_mov_b32 s15, 0x20000
    s_lshr_b32 s3, s4, 1
    s_lshl_b32 s3, s3, 15
    s_and_b32 s6, s4, 1
    s_lshl_b32 s6, s6, 13
    s_add_u32 s3, s3, s6
    v_lshlrev_b32 v4, 10, v1
    v_add_u32 v4, s3, v4
    v_lshlrev_b32 v3, 1, v1
    v_xor_b32 v3, v3, v2
    v_lshlrev_b32 v3, 4, v3
    v_add_u32 v{OG}, v4, v3
    v_add_u32 v{OG + 1}, {16384 - 1024}, v{OG}
    v_xor_b32 v{OG + 2}, 0x80, v{OG}
    v_add_u32 v{OG + 3}, {16384 + 4096 - 3072}, v{OG + 2}
    v_add_u32 v{OG + 2}, {4096 - 2048}, v{OG + 2}
    s_lshl_b32 s66, s60, 17
    s_lshl_b32 s3, s69, 8
    s_add_u32 s66, s66, s3
    s_lshl_b32 s67, s63, 17
    s_lshl_b32 s3, s62, 14
    s_add_u32 s67, s67, s3
    s_add_u32 s67, s67, s5
    v_lshlrev_b32 v10, 7, v0
    s_mov_b32 s24, s56
    s_mov_b32 s25, s57
    s_mov_b32 s26, 0x400000
    s_mov_b32 s27, 0x20000
    s_mov_b32 s32, s76
    s_mov_b32 s33, s77
    s_mov_b32 s34, 0x100000
    s_mov_b32 s35, 0x20000
    s_mul_i32 s80, s69, {QL}
    s_add_u32 s80, s80, s60
    s_add_u32 s80, s80, 8
    s_mul_i32 s80, s80, {FL}
    s_lshr_b32 s85, s60, 1
    s_mul_i32 s85, s85, {QL}
    s_and_b32 s6, s60, 1
    s_lshl_b32 s6, s6, 2
    s_add_u32 s85, s85, s6
    s_mul_i32 s85, s85, {FL}
    s_lshl_b32 s3, s69, 3
    s_add_u32 s3, s3, s60
    s_lshl_b32 s6, s62, 5
    s_add_u32 s3, s3, s6
    s_lshl_b32 s3, s3, 15
    s_add_u32 s3, s3, {PARTOFF}
    s_add_u32 s44, s58, s3
    s_addc_u32 s45, s59, 0
    s_mov_b32 s46, 0x8000
    s_mov_b32 s47, 0x20000
    s_mul_i32 s3, s62, {FSTR}
    s_add_u32 s3, s3, {FLAGOFF}
    s_add_u32 s40, s58, s3
    s_addc_u32 s41, s59, 0
    s_mov_b32 s42, {FSTR}
    s_mov_b32 s43, 0x20000
    s_lshl_b32 s3, s4, 10
    v_lshlrev_b32 v12, 4, v0
    v_add_u32 v12, s3, v12
    s_lshl_b32 s37, s62, 3
    s_add_u32 s37, s37, s60
    s_lshl_b32 s37, s37, 14
    s_lshl_b32 s3, s69, 8
    s_add_u32 s37, s37, s3
    s_lshl_b32 s3, s4, 6
    s_add_u32 s37, s37, s3
    v_lshlrev_b32 v11, 10, v2
    v_lshlrev_b32 v3, 4, v1
    v_add_u32 v11, v11, v3
    v_lshlrev_b32 v34, 4, v0
    v_add_u32 v34, s5, v34
    v_add_u32 v35, 0x10000, v34
    """
    vm, first, cur = [], [], [None]
    park, ppool, wrote, inlds = {}, [], [], []

    def issue(x, paced):
        tile, j, mode = x
        kind, t = tile
        if mode == "l":
            if paced and len(first) >= cfg.cin:
                a(f"s_waitcnt vmcnt({min(63, len(vm) - 1 - first[-cfg.cin])})")
            park[(tile, j)] = r = ppool.pop(0)
            first.append(len(vm))
            vm.append(("R", tile, j))
            g, srd = (KG + j // 2, "s[8:11]") if kind == "k" else (VG + j // 2, "s[12:15]")
            a(f"s_mov_b32 s6, {tileoff(cfg, t)}\nbuffer_load_dwordx4 {vr(r, 4)}, v{g}, {srd}, s6 offen offset:{j * 1024} nt")
            return
        if mode == "h":
            r = park.pop((tile, j))
            a(f"s_waitcnt vmcnt({min(63, len(vm) - 1 - vm.index(('R', tile, j)))})")
            off = slot[tile] * SLOT + j * 1024
            a(f"ds_write_b128 v{34 + off // 65536}, {vr(r, 4)} offset:{off % 65536}")
            wrote.append((tile, r))
            return
        if cur[0] != tile:
            cur[0] = tile
            a(f"s_add_u32 m0, s5, {slot[tile] * SLOT}")
            if kind in "kv":
                a(f"s_mov_b32 s7, {tileoff(cfg, t)}")
            elif kind == "w":
                a(f"s_add_u32 s7, s65, {t}\ns_and_b32 s7, s7, 7\ns_lshl_b32 s7, s7, 19\ns_add_u32 s7, s7, s64")
            elif kind == "x":
                a(f"s_add_u32 s7, s65, {t}\ns_and_b32 s7, s7, 7\ns_lshl_b32 s7, s7, 7")
            else:
                a(f"s_add_u32 s7, s69, {t // 2}\ns_and_b32 s7, s7, 3\ns_lshl_b32 s7, s7, 20\ns_add_u32 s7, s7, s66")
                if t % 2:
                    a("s_add_u32 s7, s7, 0x10000")
        if kind in "kv":
            if paced and len(first) >= cfg.cin:
                a(f"s_waitcnt vmcnt({min(63, len(vm) - 1 - first[-cfg.cin])})")
            first.append(len(vm))
        vm.append(tile)
        g, srd, fl = {"k": (KG + j // 2, "s[8:11]", "nt "), "v": (VG + j // 2, "s[12:15]", "nt "), "w": (WG + j, "s[20:23]", ""),
                      "x": (XG + j, "s[16:19]", ""), "o": (OG + j, "s[24:27]", "")}[kind]
        a(f"buffer_load_dwordx4 v{g}, {srd}, s7 offen offset:{j * 1024} {fl}lds")

    def phase(n, items, paced):
        needed = cons[n] + ([("o", 0), ("o", 1)] if n == 39 else [])
        if wrote:
            a("s_waitcnt lgkmcnt(0)")
            for t_, r_ in wrote:
                inlds.append(t_)
                ppool.append(r_)
            del wrote[:]
        assert all(vm.count(x) + inlds.count(x) == 4 for x in needed)
        last = max([i for i, x in enumerate(vm) if x in needed] + [0])
        if n == cfg.chk[0]:
            a("""
            s_lshl_b32 s68, s62, 4
            s_mov_b64 s[92:93], -1
            s_mov_b64 s[94:95], -1
            s_cmp_lg_u32 s4, 0
            s_cbranch_scc1 L_nomark
            s_load_dwordx4 s[92:95], s[78:79], s68
            L_nomark:
            """)
        if n == cfg.chk[1]:
            a("s_waitcnt lgkmcnt(0)\ns_and_b64 s[92:93], s[92:93], s[94:95]\ns_and_b32 s92, s92, s93\ns_cbranch_scc0 L_iwait\nL_iok:")
        a(f"; phase {n}: " + " ".join(f"{k}{t}" for k, t in needed) + " landed")
        a(f"s_waitcnt vmcnt({min(63, len(vm) - 1 - last)})\ns_barrier")
        for x in items:
            issue(x, paced)
        for k, m in enumerate(cfg.wopf):
            if n == 8 + m:
                a("; one row of wo into L2 (value unused)")
                a(f"s_mov_b64 exec, 0xff\nbuffer_load_dword v9, v10, s[24:27], s67 offen offset:{k * 1024}\ns_mov_b64 exec, -1")
                vm.append(("pf", k))

    assert all(p[0] == qvars[0][0] for p in qvars) and all(x[0][0] in "wx" for x in qvars[0][0])
    for x in qvars[0][0]:
        issue(x, False)
    vm0 = list(vm)
    a(setup2)
    a(f"s_and_b32 s3, s61, {len(qvars) - 1}")
    for vi in range(1, len(qvars)):
        a(f"s_cmp_eq_u32 s3, {vi}\ns_cbranch_scc1 L_qv{vi}")
    ends = []
    for vi, plan in enumerate(qvars):
        a(f"L_qv{vi}:")
        vm[:] = vm0
        del first[:]
        park.clear()
        ppool[:] = list(range(64, 256, 4))
        del wrote[:], inlds[:]
        cur[0] = None
        for n in range(6):
            phase(n, plan[n + 1], False)
        for n in (6, 7):
            phase(n, main[n - 6], False)
        k7 = max(i for i, x in enumerate(vm) if x == ("x", 7))
        ends.append((vm[k7:], [len(vm) - p for p in first if p > k7], dict(park), list(ppool), list(wrote)))
        if vi + 1 < len(qvars):
            a("s_branch L_qjoin")
    assert all(e == ends[0] for e in ends)
    a("L_qjoin:")
    cur[0] = None
    for m in range(32):
        phase(8 + m, main[2 + m], m < cfg.mfree)

    SEL = """
        v_and_b32 v3, 1, v2
        v_lshlrev_b32 v3, 4, v3
        v_mov_b32 v4, 0x3f80
        v_lshlrev_b32 v4, v3, v4
        v_lshrrev_b32 v5, 3, v2
        v_lshlrev_b32 v5, 1, v5
        v_bfe_u32 v6, v2, 1, 1
        v_add_u32 v5, v5, v6
        v_bfe_u32 v6, v2, 2, 1
        v_lshlrev_b32 v6, 1, v6
        v_sub_u32 v6, v1, v6
        v_lshlrev_b32 v6, 2, v6
        v_add_u32 v5, v5, v6
        """
    for k in range(8):
        SEL += f"v_cmp_eq_u32 vcc, {k}, v5\ns_nop 1\nv_cndmask_b32 v{80 + k}, 0, v4, vcc\n"
    a(f"""
    {SEL}
    v_mov_b32 v36, 1
    v_mov_b32 v37, 1
    v_mov_b32 v38, 1
    v_mov_b32 v39, 1
    v_lshlrev_b32 v8, 4, v0
    s_mul_i32 s3, s69, {FL}
    s_add_u32 s83, s85, s3
    """)
    for j in range(1, 4):
        a(f"s_add_u32 s3, s69, {j}\ns_and_b32 s3, s3, 3\ns_mul_i32 s3, s3, {FL}\ns_add_u32 s{92 + j}, s85, s3")
    OWNRD = f"; this workgroup's own share came through LDS\nv_add_u32 v13, {slot[('v', 15)] * SLOT}, v12\ns_lshl_b32 s82, 1, s60\n"
    for x in range(8):
        OWNRD += f"s_cmp_lg_u32 s60, {x}\ns_cbranch_scc1 L_ho{x}\nds_read_b128 {vr(32 + 4 * x, 4)}, v13\nL_ho{x}:\n"
    p1 = "\n".join(f"s_load_dword s{87 + j}, s[40:41], s{92 + j} glc" for j in range(1, 4))
    a(f"""
    s_mov_b32 s81, 0
    s_cmp_eq_u32 s4, 1
    s_cbranch_scc1 L_scout
    s_barrier
    s_cmp_lg_u32 s4, 0
    s_cbranch_scc1 L_h1ok
    s_mov_b64 exec, 0xff
    buffer_store_dwordx4 v[36:39], v8, s[40:43], s83 offen sc1
    s_mov_b64 exec, -1
    s_waitcnt vmcnt(1)
    s_branch L_h1go
    L_scout:
    {p1}
    s_barrier
    s_branch L_h1t
    L_h1:
    {p1}
    L_h1t:
    s_add_u32 s81, s81, 1
    s_cmp_ge_u32 s81, {SPIN}
    s_waitcnt lgkmcnt(0)
    s_cbranch_scc1 L_h1ok
    s_and_b32 s88, s88, s89
    s_and_b32 s88, s88, s90
    s_cbranch_scc0 L_h1
    L_h1ok:
    s_waitcnt vmcnt(0)
    L_h1go:
    s_barrier
    s_barrier
    s_mov_b32 s81, 0
    {OWNRD}
    L_hpoll:
    s_load_dwordx8 s[88:95], s[40:41], s80 glc
    s_add_u32 s81, s81, 1
    s_cmp_ge_u32 s81, {SPIN}
    s_cselect_b32 s86, 0xff, 0
    s_waitcnt lgkmcnt(0)
    s_or_b64 s[88:89], s[88:89], s[90:91]
    s_or_b64 s[92:93], s[92:93], s[94:95]
    s_or_b64 s[88:89], s[88:89], s[92:93]
    s_or_b32 s88, s88, s89
    s_and_b32 s88, s88, 0xff
    s_or_b32 s86, s86, s88
    s_andn2_b32 s86, s86, s82
    s_cbranch_scc0 L_hpoll
    s_or_b32 s82, s82, s86
    """)
    PB, SUM = 32, 64
    for x in range(8):
        a(f"""
        s_bitcmp1_b32 s86, {x}
        s_cbranch_scc0 L_hs{x}
        s_mov_b32 s7, {x * 4096}
        buffer_load_dwordx4 {vr(PB + 4 * x, 4)}, v12, s[44:47], s7 offen sc1
        L_hs{x}:
        """)
    a("s_cmp_eq_u32 s82, 0xff\ns_cbranch_scc0 L_hpoll\ns_waitcnt vmcnt(0)")
    for h in range(2):
        for x in range(8):
            d = vr(SUM + 4 * h, 4)
            a(f"{MF} {d}, {vr(80 + 4 * h, 4)}, {vr(PB + 4 * x, 4)}, {d if x else '0'}")
    a(f"v_cvt_pk_bf16_f32 v{SUM}, v{SUM}, v{SUM + 1}\nv_cvt_pk_bf16_f32 v{SUM + 1}, v{SUM + 2}, v{SUM + 3}\ns_nop 5")
    a(f"v_cvt_pk_bf16_f32 v{SUM + 2}, v{SUM + 4}, v{SUM + 5}\nv_cvt_pk_bf16_f32 v{SUM + 3}, v{SUM + 6}, v{SUM + 7}")
    a(f"""
    buffer_store_dwordx4 {vr(SUM, 4)}, v11, s[32:35], s37 offen nt
    s_endpgm
    L_iwait:
    v_lshlrev_b32 v8, 2, v0
    v_add_u32 v8, s68, v8
    s_mov_b32 s81, 0
    s_mov_b64 exec, 15
    L_ipoll:
    global_load_dword v9, v8, s[78:79] sc1
    s_add_u32 s81, s81, 1
    s_cmp_ge_u32 s81, {SPIN}
    s_waitcnt vmcnt(0)
    s_cbranch_scc1 L_ipok
    v_cmp_ne_u32 vcc, 0, v9
    s_nop 0
    s_cmp_eq_u32 vcc_lo, 15
    s_cbranch_scc0 L_ipoll
    L_ipok:
    s_mov_b64 exec, -1
    s_branch L_iok
    """)


def compute_waves(a, cfg, slot):
    KA, VA, XA = 16, 20, 28
    T0, T1, T2, T3, OOFF = 1, 2, 3, 30, 31
    ONES, NM, L, Q, O = 32, 36, 44, 52, 84
    S = [148, 180]
    F, NF = 212, 8
    XF = S[1]
    LB = [L, 248]
    KD = 10
    a(f"""
    L_attn:
    s_getpc_b64 s[40:41]
    L_pc:
    s_sub_u32 s40, s40, L_pc-{NAME}_kernel
    s_subb_u32 s41, s41, 0
    s_lshl_b32 s3, s61, 2
    s_add_u32 s3, s3, s4
    s_lshl_b32 s3, s3, 9
    v_and_b32 v1, 3, v0
    v_lshlrev_b32 v1, 7, v1
    v_add_u32 v1, s3, v1
    v_min_u32 v1, L_end-{NAME}_kernel, v1
    global_load_dword v247, v1, s[40:41]
    v_and_b32 v245, 15, v0
    v_lshrrev_b32 v246, 4, v0
    v_and_b32 v{T0}, 12, v245
    v_lshlrev_b32 v{T0}, 1, v{T0}
    v_and_b32 v{T1}, 3, v245
    v_or_b32 v{T0}, v{T0}, v{T1}
    v_lshlrev_b32 v{T0}, 8, v{T0}
    v_and_b32 v{T1}, 1, v246
    v_lshlrev_b32 v{T1}, 1, v{T1}
    v_lshrrev_b32 v{T2}, 1, v246
    v_or_b32 v{T1}, v{T1}, v{T2}
    v_lshlrev_b32 v{KD}, 4, v{T1}
    v_add_u32 v{KD}, v{T0}, v{KD}
    v_xor_b32 v{T1}, v{T1}, v245
    v_lshlrev_b32 v{T1}, 4, v{T1}
    v_add_u32 v{KA}, v{T0}, v{T1}
    v_xor_b32 v{KA + 1}, 64, v{KA}
    v_xor_b32 v{KA + 2}, 0x80, v{KA}
    v_xor_b32 v{KA + 3}, 0xc0, v{KA}
    v_lshrrev_b32 v{T0}, 2, v245
    v_lshlrev_b32 v{T1}, 3, v246
    v_add_u32 v{T1}, v{T1}, v{T0}
    v_lshlrev_b32 v{T1}, 8, v{T1}
    v_and_b32 v{T2}, 1, v246
    v_lshlrev_b32 v{T2}, 2, v{T2}
    v_or_b32 v{T0}, v{T0}, v{T2}
    v_lshlrev_b32 v{T0}, 5, v{T0}
    v_add_u32 v{T1}, v{T1}, v{T0}
    v_and_b32 v{T0}, 3, v0
    v_lshlrev_b32 v{T0}, 3, v{T0}
    v_add_u32 v{T1}, v{T1}, v{T0}
    v_add_u32 v{VA}, {4 * SLOT}, v{T1}
    """)
    for db in range(1, 8):
        a(f"v_xor_b32 v{VA + db}, {db * 32}, v{VA}")
    a(f"""
    v_lshrrev_b32 v{T0}, 1, v245
    v_xor_b32 v{T0}, v{T0}, v246
    v_lshlrev_b32 v{T0}, 4, v{T0}
    v_lshlrev_b32 v{T1}, 7, v245
    v_add_u32 v{T0}, v{T0}, v{T1}
    s_lshl_b32 s5, s4, 12
    s_add_u32 s3, s5, {6 * SLOT}
    v_add_u32 v{XA}, s3, v{T0}
    v_xor_b32 v{XA + 1}, 64, v{XA}
    v_lshlrev_b32 v{OOFF}, 4, v0
    s_mov_b32 s84, {CSCALE:#x}
    s_mov_b32 s85, {CSCALE:#x}
    s_mov_b32 s36, {THRESH:#x}
    """)
    a(f"""
    v_and_b32 v{T0}, 3, v0
    v_cmp_eq_u32 vcc, 0, v{T0}
    v_mov_b32 v{T1}, 0x3f803f80
    s_nop 0
    """)
    for i in range(4):
        a(f"v_cndmask_b32 v{ONES + i}, 0, v{T1}, vcc")
    a(f"""
    s_lshl_b32 s3, s4, 3
    s_add_u32 s3, s3, s60
    s_lshl_b32 s65, s62, 5
    s_add_u32 s3, s3, s65
    s_lshl_b32 s3, s3, 15
    s_lshl_b32 s68, s69, 13
    s_mov_b32 s30, 0x8000
    s_mov_b32 s31, 0x20000
    s_mul_i32 s66, s69, {QL * FL}
    s_mul_i32 s67, s4, {2 * FL}
    s_add_u32 s67, s67, s66
    s_add_u32 s67, s67, {8 * FL}
    s_lshl_b32 s7, s60, 2
    s_add_u32 s67, s67, s7
    s_lshl_b32 s6, s69, 3
    s_add_u32 s6, s6, s65
    s_lshl_b32 s6, s6, 15
    s_add_u32 s6, s6, {PARTOFF}
    s_lshl_b32 s37, s4, 16
    s_lshl_b32 s7, s60, 12
    s_add_u32 s37, s37, s7
    s_add_u32 s64, s37, 0x8000
    s_lshl_b32 s82, s62, 2
    s_add_u32 s82, s82, s69
    s_lshl_b32 s82, s82, 2
    s_mul_i32 s7, s62, {FSTR}
    s_add_u32 s7, s7, {FLAGOFF}
    s_mov_b32 s46, 0x40000
    s_mov_b32 s47, 0x20000
    s_mov_b32 s42, {FSTR}
    s_mov_b32 s43, 0x20000
    v_lshlrev_b32 v12, 4, v0
    v_mul_u32_u24 v11, {FL}, v0
    s_waitcnt lgkmcnt(0)
    s_add_u32 s28, s58, s3
    s_addc_u32 s29, s59, 0
    s_add_u32 s44, s58, s6
    s_addc_u32 s45, s59, 0
    s_add_u32 s40, s58, s7
    s_addc_u32 s41, s59, 0
    s_add_u32 s3, s65, s63
    s_lshl_b32 s3, s3, 18
    s_add_u32 s8, s50, s3
    s_addc_u32 s9, s51, 0
    s_mov_b32 s10, 0x40000
    s_mov_b32 s11, 0x20000
    s_lshl_b32 s86, s69, 1
    s_add_u32 s86, s86, s62
    s_xor_b32 s86, s86, s60
    s_and_b32 s86, s86, 7
    s_or_b32 s86, s86, s4
    """)

    def blk(base, u, qb, e):
        return base + ((u * 2 + qb) * 2 + e) * 4

    class Slot:
        def __init__(self, reads, m):
            self.reads, self.m = reads, m
            self.f = [[] for _ in m]
            self.pre = []
            self.bar = None
            self.rpos = None
    stream = []

    def flush():
        n = len(stream)
        out, pend, nxt = [], [], [0]
        gate = [min([k for k in range(n) if stream[k].bar] + [n])]

        def take(upto):
            while nxt[0] < min(upto + 1, gate[0]):
                pend.extend((nxt[0], r) for r in stream[nxt[0]].reads)
                nxt[0] += 1

        def emit(k):
            for _ in range(min(k, len(pend))):
                tag, r = pend.pop(0)
                a(r)
                out.append(tag)
            assert len(out) <= 15

        def barrier(k):
            assert gate[0] == k and nxt[0] == k and not pend
            if out:
                a("s_waitcnt lgkmcnt(0)")
                del out[:]
            a("s_barrier")
            gate[0] = min([x for x in range(k + 1, n) if stream[x].bar] + [n])
        take(1)
        emit(99)
        for i, s_ in enumerate(stream):
            for x in s_.pre:
                if x == "@BAR":
                    barrier(i)
                    take(i + 1)
                    emit(99)
                else:
                    a(x)
            lead = len(s_.m) - 4
            early = i + 2 < n and stream[i + 2].bar == "early"
            take(i + 2)
            for k, m in enumerate(s_.m):
                if k == lead:
                    assert nxt[0] > i and not any(t <= i for t, _ in pend)
                    if any(x <= i for x in out):
                        keep = [x for x in out if x > i]
                        a(f"s_waitcnt lgkmcnt({len(keep)})")
                        out[:] = keep
                if early and k == lead + 2:
                    barrier(i + 2)
                    take(i + 3)
                    emit(max(0, len(pend) - 6))
                    share = -(-len(pend) // 6)
                a(m)
                if k >= lead:
                    g = k - lead
                    if early:
                        emit(share if g >= 2 else 0)
                    elif s_.rpos and len(pend) <= len([p for p in s_.rpos if p >= g]):
                        emit(s_.rpos.count(g))
                    else:
                        emit(-(-len(pend) // (4 - g)))
                for x in s_.f[k]:
                    a(x)
        assert not out and not pend
        del stream[:]

    def quad(acc_, fr, b_, q0, c0):
        m = []
        for q, k in ((q0, 0), (q0, 1), (1 - q0, 1), (1 - q0, 0)):
            d = vr(acc_(q), 4)
            c = c0(q) if (len(m) % 2 == 0 and c0) else d
            m.append(f"{MF} {d}, {vr(fr[k], 4)}, {vr(b_(k, q), 4)}, {c}")
        return m

    def add(slots, bar, pre=(), note=""):
        slots[0].bar = bar
        slots[0].pre = list(pre) + [f"; ---- {note}"] + slots[0].pre
        stream.extend(slots)
        return slots

    fcnt, vwin = [0], [4]

    def nextf():
        fcnt[0] += 1
        return F + 4 * ((fcnt[0] - 1) % NF)

    def trreads(ar, off, dst):
        assert 0 <= off < 65536 - 1024
        return [f"ds_read_b64_tr_b16 {vr(dst, 2)}, v{ar} offset:{off}", f"ds_read_b64_tr_b16 {vr(dst + 2, 2)}, v{ar} offset:{off + 1024}"]

    for j in range(8):
        pre = []
        if j == cfg.clr[0]:
            pre += lines("s_cmp_eq_u32 s86, 0\ns_cbranch_scc1 L_clear\nL_cleared:")
        if j == cfg.clr[1]:
            pre += lines("s_cmp_eq_u32 s86, 0\ns_cbranch_scc1 L_mark\nL_marked:")
        ws_, xs_ = slot[("w", j)], slot[("x", j)]
        sl_, xf = [], XF + 16 * (j % 2)
        for db in range(8):
            fr = [nextf(), nextf()]
            r = [x for ks in range(2) for x in trreads(VA + db, (ws_ - 4) * SLOT + ks * 8192, fr[ks])]
            if db == 0:
                xr = lambda ks, qb: f"ds_read_b128 {vr(xf + 8 * ks + 4 * qb, 4)}, v{XA + ks} offset:{(xs_ - 6) * SLOT + qb * 2048}"
                r = [xr(0, 0), xr(1, 0), xr(1, 1), xr(0, 1)] + r
            sl_.append(Slot(r, quad(lambda q: blk(O, db // 2, q, db % 2), fr, lambda k, q: xf + 8 * k + 4 * q, db % 2,
                                    (lambda q: "0") if j == 0 else None)))
        add(sl_, "late" if j == 0 else "early", pre + (["@BAR"] if j == 0 else []), f"Q projection, step {j}")
    qcv = ["; Q * log2(e)/sqrt(128) -> bf16 operand fragments"]
    for fr in range(8):
        qcv += [f"v_pk_mul_f32 {vr(O + 8 * fr + 2 * i, 2)}, {vr(O + 8 * fr + 2 * i, 2)}, s[84:85]" for i in range(4)]
        qcv += [f"v_cvt_pk_bf16_f32 v{Q + 4 * fr + i}, v{O + 8 * fr + 2 * i}, v{O + 8 * fr + 2 * i + 1}" for i in range(4)]
        if fr > 0:
            p = Q + 4 * (fr - 1)
            qcv += [f"v_permlane16_swap_b32 v{p}, v{p + 2}", f"v_permlane16_swap_b32 v{p + 1}, v{p + 3}"]
    p = Q + 28
    qcv += ["s_nop 1", f"v_permlane16_swap_b32 v{p}, v{p + 2}", f"v_permlane16_swap_b32 v{p + 1}, v{p + 3}"]

    def qk(tile, sb, first=False):
        sl, out = slot[("k", tile)], []
        for kb in range(4):
            ks, e = kb // 2, kb % 2
            for g in range(2):
                s0 = 2 * (g ^ (kb % 2))
                fr = [nextf(), nextf()]
                rd = [f"ds_read_b128 {vr(fr[k], 4)}, v{KA + s0 + k} offset:{sl * SLOT + ks * 8192 + e * 1024}" for k in range(2)]
                c0 = None if g else ((lambda q: "0") if first else (lambda q: vr(NM + 4 * q, 4)))
                out.append(Slot(rd, quad(lambda q: blk(sb, ks, q, e), fr, lambda k, q: Q + 4 * (2 * (s0 + k) + q), g, c0)))
                out[-1].rpos = [1, 3]
        return out

    def maxchain(sb):
        out = [[], []]
        for qb, t in ((0, T0), (1, T1)):
            regs = [blk(sb, ks, qb, 0) + i for ks in range(2) for i in range(8)]
            out[qb].append(f"v_max3_f32 v{t}, v{regs[0]}, v{regs[1]}, v{regs[2]}")
            for i in range(3, 15, 2):
                out[qb].append(f"v_max3_f32 v{t}, v{t}, v{regs[i]}, v{regs[i + 1]}")
            out[qb].append(f"v_max_f32 v{t}, v{t}, v{regs[15]}")
        return [x for p in zip(*out) for x in p]

    def rescale(sb, first, nb=None, lo=None):
        o = lines(f"""
        v_mov_b32 v{T2}, v{T0}
        v_mov_b32 v{T3}, v{T1}
        s_nop 1
        v_permlane32_swap_b32 v{T0}, v{T2}
        v_permlane32_swap_b32 v{T1}, v{T3}
        v_max_f32 v{T0}, v{T0}, v{T2}
        v_max_f32 v{T1}, v{T1}, v{T3}
        v_mov_b32 v{T2}, v{T0}
        v_mov_b32 v{T3}, v{T1}
        s_nop 1
        v_permlane16_swap_b32 v{T0}, v{T2}
        v_permlane16_swap_b32 v{T1}, v{T3}
        """)
        if first:
            o += [f"v_max_f32 v{T0}, v{T0}, v{T2}", f"v_max_f32 v{T1}, v{T1}, v{T3}"]
        else:
            o += [f"v_max3_f32 v{T0}, v{T0}, v{T2}, 0", f"v_max3_f32 v{T1}, v{T1}, v{T3}, 0",
                  f"v_exp_f32 v{T2}, -v{T0}", f"v_exp_f32 v{T3}, -v{T1}"]
        for qb, t in ((0, T0), (1, T1)):
            for i in range(4):
                r = NM + 4 * qb + i
                o.append(f"v_sub_f32 v{r}, {'0' if first else f'v{r}'}, v{t}")
        for b_ in (sb, nb):
            for ks in range(2 if b_ else 0):
                for qb, t in ((0, T0), (1, T1)):
                    o += [f"v_sub_f32 v{blk(b_, ks, qb, 0) + i}, v{blk(b_, ks, qb, 0) + i}, v{t}" for i in range(8)]
        if not first:
            for qb, t in ((0, T2), (1, T3)):
                o += [f"v_mul_f32 v{lo + 4 * qb + i}, v{t}, v{lo + 4 * qb + i}" for i in range(4)]
                for u in range(4):
                    o += [f"v_mul_f32 v{blk(O, u, qb, 0) + i}, v{t}, v{blk(O, u, qb, 0) + i}" for i in range(8)]
        return o

    exps = lambda b: [f"v_exp_f32 v{b + i}, v{b + i}" for i in range(32)]
    cvto = lambda src, dst: [f"v_cvt_pk_bf16_f32 v{dst + 8 * (g // 4) + g % 4}, v{src + 2 * g}, v{src + 2 * g + 1}" for g in range(16)]

    def ones(src, t):
        o = []
        for q, ks in ((0, 0), (0, 1), (1, 0), (1, 1)):
            d = vr(LB[t % 2] + 4 * q, 4)
            c = d if len(o) % 2 else ("0" if t == 0 else vr(LB[(t - 1) % 2] + 4 * q, 4))
            o.append(f"{MF} {d}, {vr(ONES, 4)}, {vr(blk(src, ks, q, 0), 4)}, {c}")
        return o

    add(qk(0, S[0], first=True), "early", qcv, "scores of the first key tile")
    carry = ["; row maxima of the first tile become the softmax reference", "s_nop 7"] + maxchain(S[0]) + rescale(S[0], True)
    for t in range(16):
        cur, nxt = S[t % 2], S[(t + 1) % 2]
        ex, cv = exps(cur), cvto(cur, cur)
        chk = [f"v_max_f32 v{T0}, v{LB[t % 2]}, v{LB[t % 2] + 4}", f"v_cmp_lt_f32 vcc, s36, v{T0}"]
        br = ["; a row sum above 2^18: redo this tile against the true maxima before its weights are used",
              f"s_cbranch_vccnz L_rare{t}", f"L_back{t}:"]
        sl = slot[("v", t)]
        if t < 15:
            A_ = add(qk(t + 1, nxt), "early", carry, f"step {t}: scores(t+1) - reference; exp and row sums of tile t")
            k = c = 0
            chain = [(i, h) for i in range(6) for h in (0, 2)]
            other = [(i, h) for i in range(6) for h in (1, 3) if (h == 1 or i % 2) and (i, h) != (5, 3)]
            ne = {g: 1 for g in chain}
            rest = 32 - len(chain)
            for n_, g in enumerate(other):
                ne[g] = (rest * (n_ + 1) + len(other) - 1) // len(other) - (rest * n_ + len(other) - 1) // len(other)
            for i in range(6):
                for h in range(4):
                    if h == 1 or (h == 3 and i % 2):
                        lim = c + 3
                        while 2 * c + 2 <= k and c < min(14, lim):
                            A_[i].f[h].append(cv[c])
                            c += 1
                    for _ in range(ne.get((i, h), 0)):
                        A_[i].f[h].append(ex[k])
                        k += 1
            assert k == 32 and c == 14
            A_[6].m = ones(cur, t) + A_[6].m
            A_[6].f = [cv[14:], [], [], []] + A_[6].f
            carry = []
            if t > 0:
                A_[7].f[0].append(chk[0])
                A_[7].f[1].append(chk[1])
                carry = br
        else:
            carry += ["; last tile: final row sums first, then O and this tile's weights are normalised before the last P.V"]
            carry += ex[31:] + cvto(cur, nxt) + ones(nxt, t)
            if sl < 4:
                carry += [f"v_subrev_u32 v{VA + db}, {4 * SLOT}, v{VA + db}" for db in range(8)]
                vwin[0] = 0
            else:
                carry += ["s_nop 7"]
            carry += chk + ["s_nop 1"] + br + [f"v_rcp_f32 v{T1}, v{LB[1]}", f"v_rcp_f32 v{T2}, v{LB[1] + 4}", "s_nop 0"]
            pk = lambda r, qb: f"v_pk_mul_f32 {vr(r, 2)}, {vr(r, 2)}, {vr(T1, 2)} {['op_sel_hi:[1,0]', 'op_sel:[0,1]'][qb]}"
            carry += [pk(blk(O, u, qb, 0) + i, qb) for u in range(4) for qb in range(2) for i in range(0, 8, 2)]
            carry += [pk(blk(cur, ks, qb, 0) + i, qb) for ks in range(2) for qb in range(2) for i in range(0, 8, 2)]
            carry += ["@BAR"] + cv
        B_ = []
        for db in range(8):
            fr = [nextf(), nextf()]
            m = quad(lambda q: blk(O, db // 2, q, db % 2), fr, lambda k, q: blk(cur, k, q, 0), 1 - db % 2, (lambda q: "0") if t == 0 else None)
            B_.append(Slot([x for ks in range(2) for x in trreads(VA + db, (sl - vwin[0]) * SLOT + ks * 8192, fr[ks])], m))
        if t == 15:
            B15 = add(B_, "late", carry, "last P.V, O -> bf16 fragments -> d_ws")
            break
        add(B_, "early", carry, f"step {t}: P.V")
        carry = []
        if t == 14:
            for k, (i, h) in enumerate([(i, h) for i in range(8) for h in range(4)][1:]):
                B_[i].f[h].append(exps(nxt)[k])

    ACC, WA, wins = S[0], 4, (0, 4)
    acc = lambda nb, qb: ACC + 4 * (2 * nb + qb)
    ofr = {(0, u, qb): blk(O, u, qb, 0) for u in range(4) for qb in range(2)}
    pool = list(range(Q, Q + 32, 4)) + [O + 8 * i + 4 for i in range(8)] + list(range(32, 52, 4)) + [244, 248, 252]
    for j in range(1, 4):
        for u in range(4):
            for qb in range(2):
                ofr[(j, u, qb)] = pool.pop(0)
    assert all(slot[("o", k)] >= 6 for k in range(4)) and all(slot[("o", k)] < 6 for k in range(4, 8))
    for db in range(8):
        B15[max(0, db - 1)].f[1].append(f"v_add_u32 v{VA + db}, {(6 - vwin[0]) * SLOT}, v{VA + db}")

    def oslot(j, c, nb, ar, w0, q0):
        fr = [nextf(), nextf()]
        rd = [x for k in range(2) for x in trreads(ar, (slot[("o", 2 * j + c)] - w0) * SLOT + k * 8192, fr[k])]
        return Slot(rd, quad(lambda q: acc(nb, q), fr, lambda k, q: ofr[(j, 2 * c + k, q)], q0, (lambda q: "0") if j == 0 and c == 0 else None))

    kouter = lambda j: [oslot(j, c, nb, VA + nb, 6, nb % 2) for c in range(2) for nb in range(8)]
    OWN = add(kouter(0), None, (), "output projection: own head")
    both = B15 + OWN
    for u in range(4):
        ins = []
        for qb in range(2):
            b, fi = blk(O, u, qb, 0), 2 * u + qb
            ins += [f"v_cvt_pk_bf16_f32 v{b + i}, v{b + 2 * i}, v{b + 2 * i + 1}" for i in range(4)]
            if fi == 4:
                ins.append(f"v_add_u32 v{OOFF}, 4096, v{OOFF}")
            ins.append(f"buffer_store_dwordx4 {vr(b, 4)}, v{OOFF}, s[28:31], s68 offen offset:{(fi % 4) * 1024} sc1")
        share = [1, 2, 1, 2, 1, 2, 1, 2] if u < 3 else [5, 6]
        for k, n_ in enumerate(share):
            both[2 * u + 3 + k // 4].f[k % 4] += ins[:n_]
            ins = ins[n_:]
        assert not ins
    OWN[cfg.pub].f[3] += ["s_waitcnt vmcnt(0)", "s_barrier"]
    flush()
    oloads = []
    for j in range(1, 4):
        for fi in range(8):
            pre = {0: [f"s_add_u32 s7, s69, {j}", "s_and_b32 s7, s7, 3", "s_lshl_b32 s7, s7, 13"], 4: ["s_add_u32 s7, s7, 4096"]}.get(fi, [])
            oloads.append(pre + [f"buffer_load_dwordx4 {vr(ofr[(j, fi // 2, fi % 2)], 4)}, v12, s[28:31], s7 offen offset:{(fi % 4) * 1024} sc1"])
    allp = [(1, 0), (1, 1), (2, 0), (2, 1), (3, 0), (3, 1)]
    for j in range(1, cfg.orc + 1):
        for u in range(4):
            for q in range(2):
                ofr[(j, u, q)] = ofr[(0, u, q)]
    R = []
    def kblock(j, c):
        w0 = 6 if j == 1 else wins[0 if slot[("o", 2 * j + c)] < 4 else 1]
        for nb in range(8):
            if j == 1:
                R.append(oslot(j, c, nb, VA + nb, 6, nb % 2))
            else:
                ln = f"v_subrev_u32 v{8 + nb % 2}, {(6 - w0) * SLOT}, v{VA + nb}"
                if len(R) >= 3: R[len(R) - 3].f[1].append(ln)
                else: a(ln)
                R.append(oslot(j, c, nb, 8 + nb % 2, w0, nb % 2))
    for k, (j, c) in enumerate(allp[:2 * cfg.orc]):
        kblock(j, c)
    add(R, None, (), "oracle part")
    flush()
    a("s_barrier")
    for x in oloads[8 * cfg.orc:]:
        a("\n".join(x))
    R = []
    parts = allp[2 * cfg.orc:]
    K0, NP = 0, len(parts)
    for nb in range(8):
        ln = [f"v_subrev_u32 v{WA + 2 * (nb % 2) + wi}, {(6 - w0) * SLOT}, v{VA + nb}" for wi, w0 in enumerate(wins)]
        if NP * nb >= 3: R[NP * nb - 3].f[1] += ln
        else: a("\n".join(ln))
        for k, (j, c) in enumerate(parts if nb % 2 == 0 else parts[::-1]):
            wi = 0 if slot[("o", 2 * j + c)] < 4 else 1
            R.append(oslot(j, c, nb, WA + 2 * (nb % 2) + wi, wins[wi], len(R) % 2))
            if nb == 0:
                R[-1].pre.append(f"s_waitcnt vmcnt({4 * NP - 4 * (k + 1)})")

    ownw = []
    R[1].f[1] += [f"v_add_u32 v13, {slot[('v', 15)] * SLOT}, v12", "s_lshl_b32 s87, s4, 1", "s_sub_u32 s87, s60, s87"]

    def pack(np_):
        o = []
        for qb in range(2):
            t = O + 8 * (2 * (np_ % 2) + qb)
            for e in range(2):
                r = acc(2 * np_ + e, qb)
                o += [f"v_cvt_pk_bf16_f32 v{t + 2 * e}, v{r}, v{r + 1}", f"v_cvt_pk_bf16_f32 v{t + 2 * e + 1}, v{r + 2}, v{r + 3}"]
            st = f"buffer_store_dwordx4 {vr(t, 4)}, v12, s[44:47], s{37 if qb == 0 else 64} offen offset:{np_ * 1024} sc1"
            st = f"s_cmp_eq_u32 s87, {qb}\ns_cbranch_scc1 L_po{np_}{qb}\n{st}\nL_pb{np_}{qb}:"
            ownw.append(f"L_po{np_}{qb}:\nds_write_b128 v13, {vr(t, 4)} offset:{np_ * 1024}\ns_branch L_pb{np_}{qb}")
            o.append(st)
        return o
    for np_ in range(3):
        for k, x in enumerate(pack(np_)):
            g = ([0, 1, 2, 4, 5, 6, 8, 9, 10, 13] if NP > 2 else [0, 1, 2, 3, 5, 5, 6, 7, 8, 9])[k]
            R[K0 + 2 * NP * (np_ + 1) + 1 + g // 4].f[g % 4].append(x)
    add(R, None, (), "output projection: the other three heads, partial sums -> d_ws")
    flush()
    a("s_lshl_b32 s3, 1, s60\nv_mov_b32 v4, s3\ns_nop 5")
    a("\n".join(pack(3)))
    a(f"""
    s_waitcnt lgkmcnt(0)
    s_barrier
    s_waitcnt vmcnt(0)
    s_mov_b64 exec, 3
    buffer_store_dword v4, v11, s[40:43], s67 offen sc1
    s_endpgm
    {chr(10).join(ownw)}
    L_clear:
    v_mov_b32 v248, 0
    v_mov_b32 v249, 0
    v_mov_b32 v250, 0
    v_mov_b32 v251, 0
    v_lshrrev_b32 v244, 3, v0
    v_mul_u32_u24 v244, {FL}, v244
    v_and_b32 v245, 7, v0
    v_lshlrev_b32 v245, 4, v245
    v_add_u32 v244, v244, v245
    s_add_u32 s3, s66, {8 * FL}
    buffer_store_dwordx4 v[248:251], v244, s[40:43], s66 offen sc1
    buffer_store_dwordx4 v[248:251], v244, s[40:43], s3 offen sc1
    s_branch L_cleared
    L_mark:
    v_mov_b32 v244, s82
    v_mov_b32 v245, 1
    s_mov_b64 exec, 1
    s_waitcnt vmcnt(0)
    global_store_dword v244, v245, s[78:79] sc1
    s_mov_b64 exec, -1
    s_branch L_marked
    """)
    for t in range(1, 16):
        a(f"L_rare{t}:\ns_mov_b32 s16, {tileoff(cfg, t)}\ns_call_b64 s[38:39], L_redo{2 if t == 15 else t % 2}\ns_branch L_back{t}")
    for v in range(3):
        t = (2, 1, 15)[v]
        cur, nxt = S[t % 2], S[(t + 1) % 2]
        a(f"L_redo{v}:\ns_add_u32 s17, s16, 8192")
        for kb in range(4):
            ks, e = kb // 2, kb % 2
            for s_ in range(4):
                a(f"buffer_load_dwordx4 {vr(F + 16 + 4 * s_, 4)}, v{KD}, s[8:11], s{16 + ks} offen offset:{e * 1024 + s_ * 64}")
            a("s_waitcnt vmcnt(0)")
            for q in range(2):
                for s_ in range(4):
                    d = vr(blk(cur, ks, q, e), 4)
                    a(f"{MF} {d}, {vr(F + 16 + 4 * s_, 4)}, {vr(Q + 4 * (2 * s_ + q), 4)}, {d if s_ else vr(NM + 4 * q, 4)}")
        a("s_nop 7")
        a("\n".join(maxchain(cur) + rescale(cur, False, nxt if t < 15 else None, LB[(t - 1) % 2])))
        dst = cur if t < 15 else nxt
        a("\n".join(exps(cur) + cvto(cur, dst) + ones(dst, t)))
        a("s_nop 7\ns_setpc_b64 s[38:39]")


NOTES = """;
;   1. the four heads {x + 8c} of a batch exchange O; workgroup c multiplies all four by wo[:, 128c .. 128c+127]
"""


def build(cfg):
    a = Asm()
    cons, qvars, main, slot = schedule(cfg)
    a("""
    s_cmp_ge_u32 s2, 256
    s_cbranch_scc1 L_end
    s_load_dwordx8 s[48:55], s[0:1], 0
    s_load_dwordx2 s[56:57], s[0:1], 32
    s_load_dwordx2 s[58:59], s[0:1], 56
    s_load_dwordx4 s[76:79], s[0:1], 40
    v_lshrrev_b32 v1, 6, v0
    v_and_b32 v0, 63, v0
    v_readfirstlane_b32 s4, v1
    s_and_b32 s60, s2, 7
    s_lshr_b32 s61, s2, 3
    s_and_b32 s62, s61, 7
    s_lshr_b32 s69, s61, 3
    s_lshl_b32 s65, s69, 1
    s_add_u32 s65, s65, s62
    s_lshl_b32 s63, s69, 3
    s_add_u32 s63, s63, s60
    s_cmp_lt_u32 s4, 4
    s_cbranch_scc1 L_attn
    """)
    dma_waves(a, cfg, cons, qvars, main, slot)
    compute_waves(a, cfg, slot)
    a("L_end:\ns_endpgm")
    name = NAME + "_kernel"
    return (HEADER + "; @launch grid=(256,1,1) block=(512,1,1) lds=163840\n" + NOTES
            + '.amdgcn_target "amdgcn-amd-amdhsa--gfx950"\n.text\n'
            + f".globl {name}\n.p2align 8\n.type {name},@function\n{name}:\n"
            + a.text() + '.section .rodata,"a"\n.p2align 6\n' + kd(name, 256, 256))


def mk(name, **kw):
    c = Cfg()
    for k, v in kw.items():
        assert hasattr(c, k), k
        setattr(c, k, v)
    open(name, "w").write(build(c))


if __name__ == "__main__":
    mk(sys.argv[1] if len(sys.argv) > 1 else "final.s")
```

```python
import sys, struct, math
from common import NAME, HEADER, kd

SLOT = 16384
MF = "v_mfma_f32_16x16x32_bf16"
SPIN = 1 << 21
FLAGOFF, PARTOFF = 0x1000000, 0x2000000
FL, QL = 256, 16
FSTR = 4 * QL * FL


class Cfg:
    qplan = [["pp", "pkkkkl", "p", "p", "p", "p", "p"], ["pp", "p", "p", "pk", "p", "pkkkl", "p"]]
    cin = 5
    first = (4, 4, 4, 3)
    lend = 8
    mfree = 26
    wostart, woend = 6, 8
    wopf = (0, 1, 2, 3)
    tm = (4, 2, 8, 1)
    clr, chk = (0, 4), (16, 22)
    pub, nup = 9, 12
    omap = dict(l=(8, 15), f=(16, 11, 12), c=(13, 14), w=(9, 10), x=(17, 18, 19), b=(20, 21, 22))
    eb14 = True
    kvm = None
    ost = 'sc1'
    swp = False
    womax = 8
    xopen = False


def tileoff(cfg, t):
    x = 0
    for k, m in enumerate(cfg.tm):
        x ^= m * ((t >> k) & 1)
    return x * SLOT


def f32bits(x):
    return struct.unpack("<I", struct.pack("<f", x))[0]


CSCALE = f32bits(math.log2(math.e) / math.sqrt(128.0))
THRESH = f32bits(2.0 ** 18)


def vr(b, n):
    return f"v[{b}:{b + n - 1}]"


def lines(txt):
    return [x.strip() for x in txt.split("\n") if x.strip()]


class Asm:
    def __init__(self):
        self.l = []

    def __call__(self, s):
        for x in lines(s):
            self.l.append(("" if x.endswith(":") else "    ") + x)

    def text(self):
        return "\n".join(self.l) + "\n"


def schedule(cfg):
    cons = [[("w", t), ("x", t)] for t in range(8)]
    kv = [("k", 0)]
    for t in range(16):
        if t < 15:
            kv.append(("k", t + 1))
        kv.append(("v", t))
    cons += [[t] for t in kv]
    slot = {}
    for t in range(8):
        slot[("w", t)] = 4 + t % 3
        slot[("x", t)] = 7 + t % 3
    for t in range(4):
        slot[("k", t)] = t
    qvars = []
    for var in cfg.qplan:
        nx, busy, plan = {"p": 0, "k": 0, "l": 0}, {}, []
        for n, txt in enumerate(var, -1):
            if n >= 1:
                for t in cons[n - 1]:
                    del busy[slot[t]]
            out = []
            for c in txt:
                if c == "l":
                    out += [(("v", nx[c]), j, "l") for j in range(4)]
                    nx[c] += 1
                    continue
                tiles = [("w", nx[c]), ("x", nx[c])] if c == "p" else [(c, nx[c])]
                nx[c] += 1
                for t in tiles:
                    assert slot[t] not in busy
                    busy[slot[t]] = t
                    out += [(t, j, "d") for j in range(4)]
            plan.append(out)
            assert all(busy.get(slot[t]) == t for t in cons[n + 1])
        assert nx["p"] == 8
        qvars.append(plan)
    flat = [sorted(x for p in v for x in p) for v in qvars]
    assert all(f == flat[0] for f in flat)
    done = {x[0] for x in flat[0] if x[2] == "d"}
    touched = {x[:2]: 0 for x in flat[0] if x[2] == "l"}
    for t in range(4):
        if ("k", t) not in done:
            del slot[("k", t)]
    q = [(t, j) for t in kv if t not in done for j in range(4)]
    free = [s for s in range(10) if s not in busy]
    issued = nt = 128 - len(q) + len(touched)
    nf = len(cfg.first)
    rate = (4 * 30 + cfg.cin - issued - sum(cfg.first)) / (31 - nf)

    def tgt(m):
        c = issued + sum(cfg.first[:m + 3]) + rate * max(0, m + 3 - nf)
        return min(128, max(int(c + 0.5), 4 * (m + 2) + cfg.cin))
    woq = [(("o", p), j) for p in range(8) for j in range(4)]
    low = (0, 1, 2, 3, 4, 5)
    want = {0: (8,), 1: (9,), 2: (7, 6), 3: (7, 6), 4: low, 5: low, 6: low, 7: low}
    main = []
    for m in range(-2, 32):
        for t in cons[8 + m - 1]:
            free.append(slot[t])
        target = 128 if m >= cfg.mfree else tgt(m)
        span = max(-(-tgt(mm) // 4) - mm for mm in range(m, m + 3))
        keep = max(2, (span + 1) // 2)
        allow = {"k": [2, 3, 1, 0][:keep], "v": [5, 4, 6, 7][:keep]}
        if cfg.xopen and m >= cfg.mfree:
            allow = {"k": [2, 3, 1, 0], "v": [5, 4, 6, 7]}
        need = kv[m + 1] if -1 <= m < 31 else None
        out = []

        def alloc(t):
            if t not in slot:
                if any(x[0] not in slot for x in q[:[y[0] for y in q].index(t)]):
                    return False
                c = [s for s in ((5, 4, 3, 2, 1, 0) if t == ("v", 15) else allow[t[0]]) if s in free]
                if not c:
                    return False
                slot[t] = c[0]
                free.remove(c[0])
            return True
        for x in q:
            if x in touched:
                alloc(x[0])
        for x in list(q):
            if x in touched:
                continue
            if nt >= target and not any(y[0] == need and y not in touched for y in q):
                break
            if alloc(x[0]):
                q.remove(x)
                out.append(x + ("d",))
            elif m < cfg.lend:
                touched[x] = nt
                out.append(x + ("l",))
            else:
                break
            nt += 1
        for x in list(q):
            if x in touched and x[0] in slot and (x[0] == need or nt - touched[x] > cfg.cin):
                q.remove(x)
                out.append(x + ("h",))
        assert not any(x[0] == need for x in q)
        wocred = 1 if m >= cfg.wostart else 0
        for x in list(woq):
            if q and wocred < 1:
                break
            if not q and m < 31 and len(out) >= cfg.woend:
                break
            t = x[0]
            if t not in slot:
                if q and sum(1 for y in slot if y[0] == "o") >= cfg.womax:
                    continue
                c = [s for s in want[t[1]] if s in free and (not q or (s not in allow["k"] and s not in allow["v"]))]
                if not c:
                    continue
                slot[t] = c[0]
                free.remove(c[0])
            woq.remove(x)
            out.append(x + ("d",))
            wocred -= 1
        main.append(out)
    assert not q and not woq
    return cons, qvars, main, slot


def dma_waves(a, cfg, cons, qvars, main, slot):
    KG, VG, WG, XG, OG = 16, 18, 20, 24, 28
    a(f"""
    s_sub_u32 s4, s4, 4
    s_lshl_b32 s5, s4, 12
    v_lshrrev_b32 v1, 4, v0
    v_and_b32 v2, 15, v0
    v_lshlrev_b32 v4, 8, v1
    v_add_u32 v4, s5, v4
    v_lshlrev_b32 v3, 1, v1
    v_xor_b32 v3, v3, v2
    v_lshlrev_b32 v3, 4, v3
    v_lshlrev_b32 v7, 5, v4
    v_add_u32 v{WG}, v7, v3
    v_add_u32 v{WG + 1}, 0x7c00, v{WG}
    v_xor_b32 v{WG + 2}, 0x80, v{WG}
    v_add_u32 v{WG + 3}, 0x17400, v{WG + 2}
    v_add_u32 v{WG + 2}, 0xf800, v{WG + 2}
    v_add_u32 v{VG}, v4, v3
    v_xor_b32 v{VG + 1}, 0x80, v{VG}
    v_lshrrev_b32 v5, 3, v0
    v_and_b32 v6, 7, v0
    v_xor_b32 v6, v6, v1
    v_lshlrev_b32 v6, 4, v6
    v_lshlrev_b32 v5, 10, v5
    s_lshl_b32 s6, s4, 15
    v_add_u32 v5, s6, v5
    v_add_u32 v{XG}, v5, v6
    v_xor_b32 v{XG + 1}, 64, v{XG}
    v_add_u32 v{XG + 2}, 0x3800, v{XG}
    v_add_u32 v{XG + 3}, 0x5400, v{XG + 1}
    v_add_u32 v{XG + 1}, 0x1c00, v{XG + 1}
    s_lshl_b32 s64, s63, 8
    s_lshl_b32 s6, s62, 17
    s_mov_b32 s18, 0x20000
    s_mov_b32 s19, 0x20000
    s_mov_b32 s22, 0x400000
    s_mov_b32 s23, 0x20000
    s_waitcnt lgkmcnt(0)
    s_mov_b32 s20, s54
    s_mov_b32 s21, s55
    s_add_u32 s16, s48, s6
    s_addc_u32 s17, s49, 0
    """)
    KVX = ""
    if cfg.kvm:
        KVX = "v_lshrrev_b32 v3, 5, v0\nv_mul_u32_u24 v3, 0x7e00, v3\n" + "".join(f"v_add_u32 v{r}, v3, v{r}\n" for r in (KG, KG + 1, VG, VG + 1))
        KVX += f"s_bfe_u32 s28, s2, {cfg.kvm[2][0] | 1 << 16}\ns_mul_i32 s28, s28, {cfg.kvm[2][1]}\n"

    def kvoff(t, j):
        x = 0
        for k, m in enumerate(cfg.kvm[1]):
            x ^= m * ((t >> k) & 1)
        for k, m in enumerate(cfg.kvm[0]):
            x ^= m * ((j >> k) & 1)
        return x
    setup2 = f"""
    v_xor_b32 v3, v1, v2
    s_and_b32 s6, s4, 1
    s_lshl_b32 s6, s6, 3
    v_xor_b32 v3, s6, v3
    v_lshlrev_b32 v3, 4, v3
    v_add_u32 v{KG}, v4, v3
    v_xor_b32 v{KG + 1}, 64, v{KG}
    {KVX}
    s_lshl_b32 s3, s62, 5
    s_add_u32 s3, s3, s63
    s_lshl_b32 s3, s3, 18
    s_add_u32 s8, s50, s3
    s_addc_u32 s9, s51, 0
    s_mov_b32 s10, 0x40000
    s_mov_b32 s11, 0x20000
    s_add_u32 s12, s52, s3
    s_addc_u32 s13, s53, 0
    s_mov_b32 s14, 0x40000
    s_mov_b32 s15, 0x20000
    s_lshr_b32 s3, s4, 1
    s_lshl_b32 s3, s3, 15
    s_and_b32 s6, s4, 1
    s_lshl_b32 s6, s6, 13
    s_add_u32 s3, s3, s6
    v_lshlrev_b32 v4, 10, v1
    v_add_u32 v4, s3, v4
    v_lshlrev_b32 v3, 1, v1
    v_xor_b32 v3, v3, v2
    v_lshlrev_b32 v3, 4, v3
    v_add_u32 v{OG}, v4, v3
    v_add_u32 v{OG + 1}, {16384 - 1024}, v{OG}
    v_xor_b32 v{OG + 2}, 0x80, v{OG}
    v_add_u32 v{OG + 3}, {16384 + 4096 - 3072}, v{OG + 2}
    v_add_u32 v{OG + 2}, {4096 - 2048}, v{OG + 2}
    s_lshl_b32 s66, s60, 17
    s_lshl_b32 s3, s69, 8
    s_add_u32 s66, s66, s3
    s_lshl_b32 s67, s63, 17
    s_lshl_b32 s3, s62, 14
    s_add_u32 s67, s67, s3
    s_add_u32 s67, s67, s5
    v_lshlrev_b32 v10, 7, v0
    s_mov_b32 s24, s56
    s_mov_b32 s25, s57
    s_mov_b32 s26, 0x400000
    s_mov_b32 s27, 0x20000
    s_mov_b32 s32, s76
    s_mov_b32 s33, s77
    s_mov_b32 s34, 0x100000
    s_mov_b32 s35, 0x20000
    s_mul_i32 s80, s69, {QL}
    s_add_u32 s80, s80, s60
    s_add_u32 s80, s80, 8
    s_mul_i32 s80, s80, {FL}
    s_lshr_b32 s85, s60, 1
    s_mul_i32 s85, s85, {QL}
    s_and_b32 s6, s60, 1
    s_lshl_b32 s6, s6, 2
    s_add_u32 s85, s85, s6
    s_mul_i32 s85, s85, {FL}
    s_lshl_b32 s3, s69, 3
    s_add_u32 s3, s3, s60
    s_lshl_b32 s6, s62, 5
    s_add_u32 s3, s3, s6
    s_lshl_b32 s3, s3, 15
    {"s_and_b32 s6, s60, 1" + chr(10) + "s_mul_i32 s6, s6, 0x7e00" + chr(10) + "s_sub_u32 s3, s3, s6" if cfg.swp else ""}
    s_add_u32 s3, s3, {PARTOFF}
    s_add_u32 s44, s58, s3
    s_addc_u32 s45, s59, 0
    s_mov_b32 s46, 0x10000
    s_mov_b32 s47, 0x20000
    s_mul_i32 s3, s62, {FSTR}
    s_add_u32 s3, s3, {FLAGOFF}
    s_add_u32 s40, s58, s3
    s_addc_u32 s41, s59, 0
    s_mov_b32 s42, {FSTR}
    s_mov_b32 s43, 0x20000
    s_lshl_b32 s3, s4, 10
    v_lshlrev_b32 v12, 4, v0
    v_add_u32 v12, s3, v12
    v_lshrrev_b32 v14, 5, v0
    v_mul_u32_u24 v14, {0x7e00 if cfg.swp else 0}, v14
    v_add_u32 v14, v14, v12
    s_lshl_b32 s37, s62, 3
    s_add_u32 s37, s37, s60
    s_lshl_b32 s37, s37, 14
    s_lshl_b32 s3, s69, 8
    s_add_u32 s37, s37, s3
    s_lshl_b32 s3, s4, 6
    s_add_u32 s37, s37, s3
    v_lshlrev_b32 v11, 10, v2
    v_lshlrev_b32 v3, 4, v1
    v_add_u32 v11, v11, v3
    v_lshlrev_b32 v34, 4, v0
    v_add_u32 v34, s5, v34
    v_add_u32 v35, 0x10000, v34
    """
    vm, first, cur = [], [], [None]
    park, ppool, wrote, inlds = {}, [], [], []

    def issue(x, paced):
        tile, j, mode = x
        kind, t = tile
        if mode == "l":
            if paced and len(first) >= cfg.cin:
                a(f"s_waitcnt vmcnt({min(63, len(vm) - 1 - first[-cfg.cin])})")
            park[(tile, j)] = r = ppool.pop(0)
            first.append(len(vm))
            vm.append(("R", tile, j))
            g, srd = (KG + j // 2, "s[8:11]") if kind == "k" else (VG + j // 2, "s[12:15]")
            if cfg.kvm:
                a(f"s_xor_b32 s6, s28, {kvoff(t, j)}\nbuffer_load_dwordx4 {vr(r, 4)}, v{g}, {srd}, s6 offen nt")
                return
            a(f"s_mov_b32 s6, {tileoff(cfg, t)}\nbuffer_load_dwordx4 {vr(r, 4)}, v{g}, {srd}, s6 offen offset:{j * 1024} nt")
            return
        if mode == "h":
            r = park.pop((tile, j))
            a(f"s_waitcnt vmcnt({min(63, len(vm) - 1 - vm.index(('R', tile, j)))})")
            off = slot[tile] * SLOT + j * 1024
            a(f"ds_write_b128 v{34 + off // 65536}, {vr(r, 4)} offset:{off % 65536}")
            wrote.append((tile, r))
            return
        if cfg.kvm and kind in "kv":
            cur[0] = None
            a(f"s_add_u32 m0, s5, {slot[tile] * SLOT + j * 1024}\ns_xor_b32 s7, s28, {kvoff(t, j)}")
            if paced and len(first) >= cfg.cin:
                a(f"s_waitcnt vmcnt({min(63, len(vm) - 1 - first[-cfg.cin])})")
            first.append(len(vm))
            vm.append(tile)
            g, srd = (KG + j // 2, "s[8:11]") if kind == "k" else (VG + j // 2, "s[12:15]")
            a(f"buffer_load_dwordx4 v{g}, {srd}, s7 offen nt lds")
            return
        if cur[0] != tile:
            cur[0] = tile
            a(f"s_add_u32 m0, s5, {slot[tile] * SLOT}")
            if kind in "kv":
                a(f"s_mov_b32 s7, {tileoff(cfg, t)}")
            elif kind == "w":
                a(f"s_add_u32 s7, s65, {t}\ns_and_b32 s7, s7, 7\ns_lshl_b32 s7, s7, 19\ns_add_u32 s7, s7, s64")
            elif kind == "x":
                a(f"s_add_u32 s7, s65, {t}\ns_and_b32 s7, s7, 7\ns_lshl_b32 s7, s7, 7")
            else:
                a(f"s_add_u32 s7, s69, {t // 2}\ns_and_b32 s7, s7, 3\ns_lshl_b32 s7, s7, 20\ns_add_u32 s7, s7, s66")
                if t % 2:
                    a("s_add_u32 s7, s7, 0x10000")
        if kind in "kv":
            if paced and len(first) >= cfg.cin:
                a(f"s_waitcnt vmcnt({min(63, len(vm) - 1 - first[-cfg.cin])})")
            first.append(len(vm))
        vm.append(tile)
        g, srd, fl = {"k": (KG + j // 2, "s[8:11]", "nt "), "v": (VG + j // 2, "s[12:15]", "nt "), "w": (WG + j, "s[20:23]", ""),
                      "x": (XG + j, "s[16:19]", ""), "o": (OG + j, "s[24:27]", "")}[kind]
        a(f"buffer_load_dwordx4 v{g}, {srd}, s7 offen offset:{j * 1024} {fl}lds")

    def phase(n, items, paced):
        needed = cons[n] + ([("o", 0), ("o", 1)] if n == 39 else [])
        if wrote:
            a("s_waitcnt lgkmcnt(0)")
            for t_, r_ in wrote:
                inlds.append(t_)
                ppool.append(r_)
            del wrote[:]
        assert all(vm.count(x) + inlds.count(x) == 4 for x in needed)
        last = max([i for i, x in enumerate(vm) if x in needed] + [0])
        if n == cfg.chk[0]:
            a("""
            s_lshl_b32 s68, s62, 4
            s_mov_b64 s[92:93], -1
            s_mov_b64 s[94:95], -1
            s_cmp_lg_u32 s4, 0
            s_cbranch_scc1 L_nomark
            s_load_dwordx4 s[92:95], s[78:79], s68
            L_nomark:
            """)
        if n == cfg.chk[1]:
            a("s_waitcnt lgkmcnt(0)\ns_and_b64 s[92:93], s[92:93], s[94:95]\ns_and_b32 s92, s92, s93\ns_cbranch_scc0 L_iwait\nL_iok:")
        a(f"; phase {n}: " + " ".join(f"{k}{t}" for k, t in needed) + " landed")
        a(f"s_waitcnt vmcnt({min(63, len(vm) - 1 - last)})\ns_barrier")
        for x in items:
            issue(x, paced)
        for k, m in enumerate(cfg.wopf):
            if n == 8 + m:
                a("; one row of wo into L2 (value unused)")
                a(f"s_mov_b64 exec, 0xff\nbuffer_load_dword v9, v10, s[24:27], s67 offen offset:{k * 1024}\ns_mov_b64 exec, -1")
                vm.append(("pf", k))

    assert all(p[0] == qvars[0][0] for p in qvars) and all(x[0][0] in "wx" for x in qvars[0][0])
    for x in qvars[0][0]:
        issue(x, False)
    vm0 = list(vm)
    a(setup2)
    a(f"s_and_b32 s3, s61, {len(qvars) - 1}")
    for vi in range(1, len(qvars)):
        a(f"s_cmp_eq_u32 s3, {vi}\ns_cbranch_scc1 L_qv{vi}")
    ends = []
    for vi, plan in enumerate(qvars):
        a(f"L_qv{vi}:")
        vm[:] = vm0
        del first[:]
        park.clear()
        ppool[:] = list(range(64, 256, 4))
        del wrote[:], inlds[:]
        cur[0] = None
        for n in range(6):
            phase(n, plan[n + 1], False)
        for n in (6, 7):
            phase(n, main[n - 6], False)
        k7 = max(i for i, x in enumerate(vm) if x == ("x", 7))
        ends.append((vm[k7:], [len(vm) - p for p in first if p > k7], dict(park), list(ppool), list(wrote)))
        if vi + 1 < len(qvars):
            a("s_branch L_qjoin")
    assert all(e == ends[0] for e in ends)
    a("L_qjoin:")
    cur[0] = None
    for m in range(32):
        phase(8 + m, main[2 + m], m < cfg.mfree)

    SEL = """
        v_and_b32 v3, 1, v2
        v_lshlrev_b32 v3, 4, v3
        v_mov_b32 v4, 0x3f80
        v_lshlrev_b32 v4, v3, v4
        v_lshrrev_b32 v5, 3, v2
        v_lshlrev_b32 v5, 1, v5
        v_bfe_u32 v6, v2, 1, 1
        v_add_u32 v5, v5, v6
        v_bfe_u32 v6, v2, 2, 1
        v_lshlrev_b32 v6, 1, v6
        v_sub_u32 v6, v1, v6
        v_lshlrev_b32 v6, 2, v6
        v_add_u32 v5, v5, v6
        """
    for k in range(8):
        SEL += f"v_cmp_eq_u32 vcc, {k}, v5\ns_nop 1\nv_cndmask_b32 v{80 + k}, 0, v4, vcc\n"
    a(f"""
    {SEL}
    v_mov_b32 v36, 1
    v_mov_b32 v37, 1
    v_mov_b32 v38, 1
    v_mov_b32 v39, 1
    v_lshlrev_b32 v8, 4, v0
    s_mul_i32 s3, s69, {FL}
    s_add_u32 s83, s85, s3
    """)
    for j in range(1, 4):
        a(f"s_add_u32 s3, s69, {j}\ns_and_b32 s3, s3, 3\ns_mul_i32 s3, s3, {FL}\ns_add_u32 s{92 + j}, s85, s3")
    OWNRD = f"; this workgroup's own share came through LDS\nv_add_u32 v13, {slot[('v', 15)] * SLOT}, v12\ns_lshl_b32 s82, 1, s60\n"
    for x in range(8):
        OWNRD += f"s_cmp_lg_u32 s60, {x}\ns_cbranch_scc1 L_ho{x}\nds_read_b128 {vr(32 + 4 * x, 4)}, v13\nL_ho{x}:\n"
    p1 = "\n".join(f"s_load_dword s{87 + j}, s[40:41], s{92 + j} glc" for j in range(1, 4))
    a(f"""
    s_mov_b32 s81, 0
    s_cmp_eq_u32 s4, 1
    s_cbranch_scc1 L_scout
    s_barrier
    s_cmp_lg_u32 s4, 0
    s_cbranch_scc1 L_h1ok
    s_mov_b64 exec, 0xff
    buffer_store_dwordx4 v[36:39], v8, s[40:43], s83 offen sc1
    s_mov_b64 exec, -1
    s_waitcnt vmcnt(1)
    s_branch L_h1go
    L_scout:
    {p1}
    s_barrier
    s_branch L_h1t
    L_h1:
    {p1}
    L_h1t:
    s_add_u32 s81, s81, 1
    s_cmp_ge_u32 s81, {SPIN}
    s_waitcnt lgkmcnt(0)
    s_cbranch_scc1 L_h1ok
    s_and_b32 s88, s88, s89
    s_and_b32 s88, s88, s90
    s_cbranch_scc0 L_h1
    L_h1ok:
    s_waitcnt vmcnt(0)
    L_h1go:
    s_barrier
    s_barrier
    s_mov_b32 s81, 0
    {OWNRD}
    L_hpoll:
    s_load_dwordx8 s[88:95], s[40:41], s80 glc
    s_add_u32 s81, s81, 1
    s_cmp_ge_u32 s81, {SPIN}
    s_cselect_b32 s86, 0xff, 0
    s_waitcnt lgkmcnt(0)
    s_or_b64 s[88:89], s[88:89], s[90:91]
    s_or_b64 s[92:93], s[92:93], s[94:95]
    s_or_b64 s[88:89], s[88:89], s[92:93]
    s_or_b32 s88, s88, s89
    s_and_b32 s88, s88, 0xff
    s_or_b32 s86, s86, s88
    s_andn2_b32 s86, s86, s82
    s_cbranch_scc0 L_hpoll
    s_or_b32 s82, s82, s86
    """)
    PB, SUM = 32, 64
    for x in range(8):
        a(f"""
        s_bitcmp1_b32 s86, {x}
        s_cbranch_scc0 L_hs{x}
        s_mov_b32 s7, {x * 4096}
        buffer_load_dwordx4 {vr(PB + 4 * x, 4)}, v14, s[44:47], s7 offen sc1
        L_hs{x}:
        """)
    a("s_cmp_eq_u32 s82, 0xff\ns_cbranch_scc0 L_hpoll\ns_waitcnt vmcnt(0)")
    for h in range(2):
        for x in range(8):
            d = vr(SUM + 4 * h, 4)
            a(f"{MF} {d}, {vr(80 + 4 * h, 4)}, {vr(PB + 4 * x, 4)}, {d if x else '0'}")
    a(f"v_cvt_pk_bf16_f32 v{SUM}, v{SUM}, v{SUM + 1}\nv_cvt_pk_bf16_f32 v{SUM + 1}, v{SUM + 2}, v{SUM + 3}\ns_nop 5")
    a(f"v_cvt_pk_bf16_f32 v{SUM + 2}, v{SUM + 4}, v{SUM + 5}\nv_cvt_pk_bf16_f32 v{SUM + 3}, v{SUM + 6}, v{SUM + 7}")
    a(f"""
    buffer_store_dwordx4 {vr(SUM, 4)}, v11, s[32:35], s37 offen nt
    s_endpgm
    L_iwait:
    v_lshlrev_b32 v8, 2, v0
    v_add_u32 v8, s68, v8
    s_mov_b32 s81, 0
    s_mov_b64 exec, 15
    L_ipoll:
    global_load_dword v9, v8, s[78:79] sc1
    s_add_u32 s81, s81, 1
    s_cmp_ge_u32 s81, {SPIN}
    s_waitcnt vmcnt(0)
    s_cbranch_scc1 L_ipok
    v_cmp_ne_u32 vcc, 0, v9
    s_nop 0
    s_cmp_eq_u32 vcc_lo, 15
    s_cbranch_scc0 L_ipoll
    L_ipok:
    s_mov_b64 exec, -1
    s_branch L_iok
    """)


def compute_waves(a, cfg, slot):
    KA, VA, XA = 16, 20, 28
    T0, T1, T2, T3, OOFF = 1, 2, 3, 30, 31
    ONES, NM, L, Q, O = 32, 36, 44, 52, 84
    S = [148, 180]
    F, NF = 212, 8
    XF = S[1]
    LB = [L, 248]
    KD = 10
    a(f"""
    L_attn:
    s_getpc_b64 s[40:41]
    L_pc:
    s_sub_u32 s40, s40, L_pc-{NAME}_kernel
    s_subb_u32 s41, s41, 0
    s_lshl_b32 s3, s61, 2
    s_add_u32 s3, s3, s4
    s_lshl_b32 s3, s3, 9
    v_and_b32 v1, 3, v0
    v_lshlrev_b32 v1, 7, v1
    v_add_u32 v1, s3, v1
    v_min_u32 v1, L_end-{NAME}_kernel, v1
    global_load_dword v247, v1, s[40:41]
    v_and_b32 v245, 15, v0
    v_lshrrev_b32 v246, 4, v0
    v_and_b32 v{T0}, 12, v245
    v_lshlrev_b32 v{T0}, 1, v{T0}
    v_and_b32 v{T1}, 3, v245
    v_or_b32 v{T0}, v{T0}, v{T1}
    v_lshlrev_b32 v{T0}, 8, v{T0}
    v_and_b32 v{T1}, 1, v246
    v_lshlrev_b32 v{T1}, 1, v{T1}
    v_lshrrev_b32 v{T2}, 1, v246
    v_or_b32 v{T1}, v{T1}, v{T2}
    v_lshlrev_b32 v{KD}, 4, v{T1}
    v_add_u32 v{KD}, v{T0}, v{KD}
    v_xor_b32 v{T1}, v{T1}, v245
    v_lshlrev_b32 v{T1}, 4, v{T1}
    v_add_u32 v{KA}, v{T0}, v{T1}
    v_xor_b32 v{KA + 1}, 64, v{KA}
    v_xor_b32 v{KA + 2}, 0x80, v{KA}
    v_xor_b32 v{KA + 3}, 0xc0, v{KA}
    v_lshrrev_b32 v{T0}, 2, v245
    v_lshlrev_b32 v{T1}, 3, v246
    v_add_u32 v{T1}, v{T1}, v{T0}
    v_lshlrev_b32 v{T1}, 8, v{T1}
    v_and_b32 v{T2}, 1, v246
    v_lshlrev_b32 v{T2}, 2, v{T2}
    v_or_b32 v{T0}, v{T0}, v{T2}
    v_lshlrev_b32 v{T0}, 5, v{T0}
    v_add_u32 v{T1}, v{T1}, v{T0}
    v_and_b32 v{T0}, 3, v0
    v_lshlrev_b32 v{T0}, 3, v{T0}
    v_add_u32 v{T1}, v{T1}, v{T0}
    v_add_u32 v{VA}, {4 * SLOT}, v{T1}
    """)
    for db in range(1, 8):
        a(f"v_xor_b32 v{VA + db}, {db * 32}, v{VA}")
    a(f"""
    v_lshrrev_b32 v{T0}, 1, v245
    v_xor_b32 v{T0}, v{T0}, v246
    v_lshlrev_b32 v{T0}, 4, v{T0}
    v_lshlrev_b32 v{T1}, 7, v245
    v_add_u32 v{T0}, v{T0}, v{T1}
    s_lshl_b32 s5, s4, 12
    s_add_u32 s3, s5, {6 * SLOT}
    v_add_u32 v{XA}, s3, v{T0}
    v_xor_b32 v{XA + 1}, 64, v{XA}
    s_mov_b32 s84, {CSCALE:#x}
    s_mov_b32 s85, {CSCALE:#x}
    s_mov_b32 s36, {THRESH:#x}
    """)
    a(f"""
    v_and_b32 v{T0}, 3, v0
    v_cmp_eq_u32 vcc, 0, v{T0}
    v_mov_b32 v{T1}, 0x3f803f80
    s_nop 0
    """)
    for i in range(4):
        a(f"v_cndmask_b32 v{ONES + i}, 0, v{T1}, vcc")
    om = cfg.omap
    used = sorted(b for v in om.values() for b in v)
    assert len(set(used)) == 15 and max(used) < 24 and min(used) >= 8
    scat = lambda dst, src, bits: "".join(f"s_bfe_u32 s3, {src}, {k | 1 << 16}\ns_lshl_b32 s3, s3, {b}\ns_or_b32 {dst}, {dst}, s3\n" for k, b in enumerate(bits))
    OBASE = "s_mov_b32 s12, 0\n" + scat("s12", "s4", om["w"]) + scat("s12", "s60", om["x"]) + scat("s12", "s62", om["b"])
    for j in range(4):
        OBASE += f"s_add_u32 s7, s69, {j}\ns_mov_b32 s{20 + j}, s12\n" + scat(f"s{20 + j}", "s7", om["c"])
    OBASE += f"v_lshlrev_b32 v{OOFF}, 4, v245\n"
    for k, b in enumerate(om["l"]):
        OBASE += f"v_bfe_u32 v{T0}, v0, {4 + k}, 1\nv_lshlrev_b32 v{T0}, {b}, v{T0}\nv_or_b32 v{OOFF}, v{OOFF}, v{T0}\n"
    foff = lambda fi: sum(((fi >> k) & 1) << b for k, b in enumerate(om["f"]))
    a(f"""
    s_lshl_b32 s65, s62, 5
    {OBASE}
    s_mov_b32 s30, {FLAGOFF}
    s_mov_b32 s31, 0x20000
    s_mul_i32 s66, s69, {QL * FL}
    s_mul_i32 s67, s4, {2 * FL}
    s_add_u32 s67, s67, s66
    s_add_u32 s67, s67, {8 * FL}
    s_lshl_b32 s7, s60, 2
    s_add_u32 s67, s67, s7
    s_lshl_b32 s6, s69, 3
    s_add_u32 s6, s6, s65
    s_lshl_b32 s6, s6, 15
    s_add_u32 s6, s6, {PARTOFF}
    s_lshl_b32 s37, s4, 16
    s_lshl_b32 s7, s60, 12
    s_add_u32 s37, s37, s7
    s_add_u32 s64, s37, {0x200 if cfg.swp else 0x8000}
    s_lshl_b32 s82, s62, 2
    s_add_u32 s82, s82, s69
    s_lshl_b32 s82, s82, 2
    s_mul_i32 s7, s62, {FSTR}
    s_add_u32 s7, s7, {FLAGOFF}
    s_mov_b32 s46, 0x40000
    s_mov_b32 s47, 0x20000
    s_mov_b32 s42, {FSTR}
    s_mov_b32 s43, 0x20000
    v_lshlrev_b32 v12, 4, v0
    v_mul_u32_u24 v11, {FL}, v0
    v_lshrrev_b32 v14, 5, v0
    v_mul_u32_u24 v14, {0x7e00 if cfg.swp else 0}, v14
    v_add_u32 v14, v14, v12
    s_waitcnt lgkmcnt(0)
    s_mov_b32 s28, s58
    s_mov_b32 s29, s59
    s_add_u32 s44, s58, s6
    s_addc_u32 s45, s59, 0
    s_add_u32 s40, s58, s7
    s_addc_u32 s41, s59, 0
    s_add_u32 s3, s65, s63
    s_lshl_b32 s3, s3, 18
    s_add_u32 s8, s50, s3
    s_addc_u32 s9, s51, 0
    s_mov_b32 s10, 0x40000
    s_mov_b32 s11, 0x20000
    s_lshl_b32 s86, s69, 1
    s_add_u32 s86, s86, s62
    s_xor_b32 s86, s86, s60
    s_and_b32 s86, s86, 7
    s_or_b32 s86, s86, s4
    """)

    def blk(base, u, qb, e):
        return base + ((u * 2 + qb) * 2 + e) * 4

    class Slot:
        def __init__(self, reads, m):
            self.reads, self.m = reads, m
            self.f = [[] for _ in m]
            self.pre = []
            self.bar = None
            self.rpos = None
    stream = []

    def flush():
        n = len(stream)
        out, pend, nxt = [], [], [0]
        gate = [min([k for k in range(n) if stream[k].bar] + [n])]

        def take(upto):
            while nxt[0] < min(upto + 1, gate[0]):
                pend.extend((nxt[0], r) for r in stream[nxt[0]].reads)
                nxt[0] += 1

        def emit(k):
            for _ in range(min(k, len(pend))):
                tag, r = pend.pop(0)
                a(r)
                out.append(tag)
            assert len(out) <= 15

        def barrier(k):
            assert gate[0] == k and nxt[0] == k and not pend
            if out:
                a("s_waitcnt lgkmcnt(0)")
                del out[:]
            a("s_barrier")
            gate[0] = min([x for x in range(k + 1, n) if stream[x].bar] + [n])
        take(1)
        emit(99)
        for i, s_ in enumerate(stream):
            for x in s_.pre:
                if x == "@BAR":
                    barrier(i)
                    take(i + 1)
                    emit(99)
                else:
                    a(x)
            lead = len(s_.m) - 4
            early = i + 2 < n and stream[i + 2].bar == "early"
            take(i + 2)
            for k, m in enumerate(s_.m):
                if k == lead:
                    assert nxt[0] > i and not any(t <= i for t, _ in pend)
                    if any(x <= i for x in out):
                        keep = [x for x in out if x > i]
                        a(f"s_waitcnt lgkmcnt({len(keep)})")
                        out[:] = keep
                if early and k == lead + 2:
                    barrier(i + 2)
                    take(i + 3)
                    emit(max(0, len(pend) - 6))
                    share = -(-len(pend) // 6)
                a(m)
                if k >= lead:
                    g = k - lead
                    if early:
                        emit(share if g >= 2 else 0)
                    elif s_.rpos and len(pend) <= len([p for p in s_.rpos if p >= g]):
                        emit(s_.rpos.count(g))
                    else:
                        emit(-(-len(pend) // (4 - g)))
                for x in s_.f[k]:
                    a(x)
        assert not out and not pend
        del stream[:]

    def quad(acc_, fr, b_, q0, c0):
        m = []
        for q, k in ((q0, 0), (q0, 1), (1 - q0, 1), (1 - q0, 0)):
            d = vr(acc_(q), 4)
            c = c0(q) if (len(m) % 2 == 0 and c0) else d
            m.append(f"{MF} {d}, {vr(fr[k], 4)}, {vr(b_(k, q), 4)}, {c}")
        return m

    def add(slots, bar, pre=(), note=""):
        slots[0].bar = bar
        slots[0].pre = list(pre) + [f"; ---- {note}"] + slots[0].pre
        stream.extend(slots)
        return slots

    fcnt, vwin = [0], [4]

    def nextf():
        fcnt[0] += 1
        return F + 4 * ((fcnt[0] - 1) % NF)

    def trreads(ar, off, dst):
        assert 0 <= off < 65536 - 1024
        return [f"ds_read_b64_tr_b16 {vr(dst, 2)}, v{ar} offset:{off}", f"ds_read_b64_tr_b16 {vr(dst + 2, 2)}, v{ar} offset:{off + 1024}"]

    for j in range(8):
        pre = []
        if j == cfg.clr[0]:
            pre += lines("s_cmp_eq_u32 s86, 0\ns_cbranch_scc1 L_clear\nL_cleared:")
        if j == cfg.clr[1]:
            pre += lines("s_cmp_eq_u32 s86, 0\ns_cbranch_scc1 L_mark\nL_marked:")
        ws_, xs_ = slot[("w", j)], slot[("x", j)]
        sl_, xf = [], XF + 16 * (j % 2)
        for db in range(8):
            fr = [nextf(), nextf()]
            r = [x for ks in range(2) for x in trreads(VA + db, (ws_ - 4) * SLOT + ks * 8192, fr[ks])]
            if db == 0:
                xr = lambda ks, qb: f"ds_read_b128 {vr(xf + 8 * ks + 4 * qb, 4)}, v{XA + ks} offset:{(xs_ - 6) * SLOT + qb * 2048}"
                r = [xr(0, 0), xr(1, 0), xr(1, 1), xr(0, 1)] + r
            sl_.append(Slot(r, quad(lambda q: blk(O, db // 2, q, db % 2), fr, lambda k, q: xf + 8 * k + 4 * q, db % 2,
                                    (lambda q: "0") if j == 0 else None)))
        add(sl_, "late" if j == 0 else "early", pre + (["@BAR"] if j == 0 else []), f"Q projection, step {j}")
    qcv = ["; Q * log2(e)/sqrt(128) -> bf16 operand fragments"]
    for fr in range(8):
        qcv += [f"v_pk_mul_f32 {vr(O + 8 * fr + 2 * i, 2)}, {vr(O + 8 * fr + 2 * i, 2)}, s[84:85]" for i in range(4)]
        qcv += [f"v_cvt_pk_bf16_f32 v{Q + 4 * fr + i}, v{O + 8 * fr + 2 * i}, v{O + 8 * fr + 2 * i + 1}" for i in range(4)]
        if fr > 0:
            p = Q + 4 * (fr - 1)
            qcv += [f"v_permlane16_swap_b32 v{p}, v{p + 2}", f"v_permlane16_swap_b32 v{p + 1}, v{p + 3}"]
    p = Q + 28
    qcv += ["s_nop 1", f"v_permlane16_swap_b32 v{p}, v{p + 2}", f"v_permlane16_swap_b32 v{p + 1}, v{p + 3}"]

    def qk(tile, sb, first=False):
        sl, out = slot[("k", tile)], []
        for kb in range(4):
            ks, e = kb // 2, kb % 2
            for g in range(2):
                s0 = 2 * (g ^ (kb % 2))
                fr = [nextf(), nextf()]
                rd = [f"ds_read_b128 {vr(fr[k], 4)}, v{KA + s0 + k} offset:{sl * SLOT + ks * 8192 + e * 1024}" for k in range(2)]
                c0 = None if g else ((lambda q: "0") if first else (lambda q: vr(NM + 4 * q, 4)))
                out.append(Slot(rd, quad(lambda q: blk(sb, ks, q, e), fr, lambda k, q: Q + 4 * (2 * (s0 + k) + q), g, c0)))
                out[-1].rpos = [1, 3]
        return out

    def maxchain(sb):
        out = [[], []]
        for qb, t in ((0, T0), (1, T1)):
            regs = [blk(sb, ks, qb, 0) + i for ks in range(2) for i in range(8)]
            out[qb].append(f"v_max3_f32 v{t}, v{regs[0]}, v{regs[1]}, v{regs[2]}")
            for i in range(3, 15, 2):
                out[qb].append(f"v_max3_f32 v{t}, v{t}, v{regs[i]}, v{regs[i + 1]}")
            out[qb].append(f"v_max_f32 v{t}, v{t}, v{regs[15]}")
        return [x for p in zip(*out) for x in p]

    def rescale(sb, first, nb=None, lo=None):
        o = lines(f"""
        v_mov_b32 v{T2}, v{T0}
        v_mov_b32 v{T3}, v{T1}
        s_nop 1
        v_permlane32_swap_b32 v{T0}, v{T2}
        v_permlane32_swap_b32 v{T1}, v{T3}
        v_max_f32 v{T0}, v{T0}, v{T2}
        v_max_f32 v{T1}, v{T1}, v{T3}
        v_mov_b32 v{T2}, v{T0}
        v_mov_b32 v{T3}, v{T1}
        s_nop 1
        v_permlane16_swap_b32 v{T0}, v{T2}
        v_permlane16_swap_b32 v{T1}, v{T3}
        """)
        if first:
            o += [f"v_max_f32 v{T0}, v{T0}, v{T2}", f"v_max_f32 v{T1}, v{T1}, v{T3}"]
        else:
            o += [f"v_max3_f32 v{T0}, v{T0}, v{T2}, 0", f"v_max3_f32 v{T1}, v{T1}, v{T3}, 0",
                  f"v_exp_f32 v{T2}, -v{T0}", f"v_exp_f32 v{T3}, -v{T1}"]
        for qb, t in ((0, T0), (1, T1)):
            for i in range(4):
                r = NM + 4 * qb + i
                o.append(f"v_sub_f32 v{r}, {'0' if first else f'v{r}'}, v{t}")
        for b_ in (sb, nb):
            for ks in range(2 if b_ else 0):
                for qb, t in ((0, T0), (1, T1)):
                    o += [f"v_sub_f32 v{blk(b_, ks, qb, 0) + i}, v{blk(b_, ks, qb, 0) + i}, v{t}" for i in range(8)]
        if not first:
            for qb, t in ((0, T2), (1, T3)):
                o += [f"v_mul_f32 v{lo + 4 * qb + i}, v{t}, v{lo + 4 * qb + i}" for i in range(4)]
                for u in range(4):
                    o += [f"v_mul_f32 v{blk(O, u, qb, 0) + i}, v{t}, v{blk(O, u, qb, 0) + i}" for i in range(8)]
        return o

    exps = lambda b: [f"v_exp_f32 v{b + i}, v{b + i}" for i in range(32)]
    cvto = lambda src, dst: [f"v_cvt_pk_bf16_f32 v{dst + 8 * (g // 4) + g % 4}, v{src + 2 * g}, v{src + 2 * g + 1}" for g in range(16)]

    def ones(src, t):
        o = []
        for q, ks in ((0, 0), (0, 1), (1, 0), (1, 1)):
            d = vr(LB[t % 2] + 4 * q, 4)
            c = d if len(o) % 2 else ("0" if t == 0 else vr(LB[(t - 1) % 2] + 4 * q, 4))
            o.append(f"{MF} {d}, {vr(ONES, 4)}, {vr(blk(src, ks, q, 0), 4)}, {c}")
        return o

    add(qk(0, S[0], first=True), "early", qcv, "scores of the first key tile")
    carry = ["; row maxima of the first tile become the softmax reference", "s_nop 7"] + maxchain(S[0]) + rescale(S[0], True)
    for t in range(16):
        cur, nxt = S[t % 2], S[(t + 1) % 2]
        ex, cv = exps(cur), cvto(cur, cur)
        chk = [f"v_max_f32 v{T0}, v{LB[t % 2]}, v{LB[t % 2] + 4}", f"v_cmp_lt_f32 vcc, s36, v{T0}"]
        br = ["; a row sum above 2^18: redo this tile against the true maxima before its weights are used",
              f"s_cbranch_vccnz L_rare{t}", f"L_back{t}:"]
        sl = slot[("v", t)]
        if t < 15:
            A_ = add(qk(t + 1, nxt), "early", carry, f"step {t}: scores(t+1) - reference; exp and row sums of tile t")
            k = c = 0
            chain = [(i, h) for i in range(6) for h in (0, 2)]
            other = [(i, h) for i in range(6) for h in (1, 3) if (h == 1 or i % 2) and (i, h) != (5, 3)]
            ne = {g: 1 for g in chain}
            rest = 32 - len(chain)
            for n_, g in enumerate(other):
                ne[g] = (rest * (n_ + 1) + len(other) - 1) // len(other) - (rest * n_ + len(other) - 1) // len(other)
            for i in range(6):
                for h in range(4):
                    if h == 1 or (h == 3 and i % 2):
                        lim = c + 3
                        while 2 * c + 2 <= k and c < min(14, lim):
                            A_[i].f[h].append(cv[c])
                            c += 1
                    for _ in range(ne.get((i, h), 0)):
                        A_[i].f[h].append(ex[k])
                        k += 1
            assert k == 32 and c == 14
            A_[6].m = ones(cur, t) + A_[6].m
            A_[6].f = [cv[14:], [], [], []] + A_[6].f
            carry = []
            if t > 0:
                A_[7].f[0].append(chk[0])
                A_[7].f[1].append(chk[1])
                carry = br
        else:
            carry += ["; last tile: final row sums first, then O and this tile's weights are normalised before the last P.V"]
            carry += ex[31 if cfg.eb14 else 0:] + cvto(cur, nxt) + ones(nxt, t)
            if sl < 4:
                carry += [f"v_subrev_u32 v{VA + db}, {4 * SLOT}, v{VA + db}" for db in range(8)]
                vwin[0] = 0
            else:
                carry += ["s_nop 7"]
            carry += chk + ["s_nop 1"] + br + [f"v_rcp_f32 v{T1}, v{LB[1]}", f"v_rcp_f32 v{T2}, v{LB[1] + 4}", "s_nop 0"]
            pk = lambda r, qb: f"v_pk_mul_f32 {vr(r, 2)}, {vr(r, 2)}, {vr(T1, 2)} {['op_sel_hi:[1,0]', 'op_sel:[0,1]'][qb]}"
            carry += [pk(blk(O, u, qb, 0) + i, qb) for u in range(4) for qb in range(2) for i in range(0, 8, 2)]
            carry += [pk(blk(cur, ks, qb, 0) + i, qb) for ks in range(2) for qb in range(2) for i in range(0, 8, 2)]
            carry += ["@BAR"] + cv
        B_ = []
        for db in range(8):
            fr = [nextf(), nextf()]
            m = quad(lambda q: blk(O, db // 2, q, db % 2), fr, lambda k, q: blk(cur, k, q, 0), 1 - db % 2, (lambda q: "0") if t == 0 else None)
            B_.append(Slot([x for ks in range(2) for x in trreads(VA + db, (sl - vwin[0]) * SLOT + ks * 8192, fr[ks])], m))
        if t == 15:
            B15 = add(B_, "late", carry, "last P.V, O -> bf16 fragments -> d_ws")
            break
        add(B_, "early", carry, f"step {t}: P.V")
        carry = []
        if t == 14 and cfg.eb14:
            for k, (i, h) in enumerate([(i, h) for i in range(8) for h in range(4)][1:]):
                B_[i].f[h].append(exps(nxt)[k])

    ACC, WA, wins = S[0], 4, (0, 4)
    acc = lambda nb, qb: ACC + 4 * (2 * nb + qb)
    ofr = {(0, u, qb): blk(O, u, qb, 0) for u in range(4) for qb in range(2)}
    pool = list(range(Q, Q + 32, 4)) + [O + 8 * i + 4 for i in range(8)] + list(range(32, 52, 4)) + [244, 248, 252]
    for j in range(1, 4):
        for u in range(4):
            for qb in range(2):
                ofr[(j, u, qb)] = pool.pop(0)
    assert all(slot[("o", k)] >= 6 for k in range(4)) and all(slot[("o", k)] < 6 for k in range(4, 8))
    for db in range(8):
        B15[max(0, db - 1)].f[1].append(f"v_add_u32 v{VA + db}, {(6 - vwin[0]) * SLOT}, v{VA + db}")

    def oslot(j, c, nb, ar, w0, q0):
        fr = [nextf(), nextf()]
        rd = [x for k in range(2) for x in trreads(ar, (slot[("o", 2 * j + c)] - w0) * SLOT + k * 8192, fr[k])]
        return Slot(rd, quad(lambda q: acc(nb, q), fr, lambda k, q: ofr[(j, 2 * c + k, q)], q0, (lambda q: "0") if j == 0 and c == 0 else None))

    kouter = lambda j: [oslot(j, c, nb, VA + nb, 6, nb % 2) for c in range(2) for nb in range(8)]
    OWN = add(kouter(0), None, (), "output projection: own head")
    both = B15 + OWN
    for u in range(4):
        ins = []
        for qb in range(2):
            b, fi = blk(O, u, qb, 0), 2 * u + qb
            ins += [f"v_cvt_pk_bf16_f32 v{b + i}, v{b + 2 * i}, v{b + 2 * i + 1}" for i in range(4)]
            ins.append(f"s_add_u32 s7, s20, {foff(fi)}\nbuffer_store_dwordx4 {vr(b, 4)}, v{OOFF}, s[28:31], s7 offen {cfg.ost}")
        share = [1, 2, 1, 2, 1, 2, 1, 2] if u < 3 else [5, 6]
        for k, n_ in enumerate(share):
            both[2 * u + 3 + k // 4].f[k % 4] += ins[:n_]
            ins = ins[n_:]
        assert not ins
    OWN[cfg.pub].f[3] += ["s_waitcnt vmcnt(0)", "s_barrier"]
    flush()
    a("; released once the other three heads' O is in d_ws\ns_barrier")
    oloads = []
    for j in range(1, 4):
        for fi in range(8):
            oloads.append([f"s_add_u32 s7, s{20 + j}, {foff(fi)}", f"buffer_load_dwordx4 {vr(ofr[(j, fi // 2, fi % 2)], 4)}, v{OOFF}, s[28:31], s7 offen sc1"])
    for x in oloads[:cfg.nup]:
        a("\n".join(x))
    K0, NP, parts = 16, 4, [(2, 0), (2, 1), (3, 0), (3, 1)]
    R = kouter(1)
    at = []
    for k in range(24 - cfg.nup):
        at.append((k * 26) // (24 - cfg.nup))
    before = lambda sl_: cfg.nup + sum(1 for v in at if v < 2 * sl_)
    for nb in range(8):
        R[K0 + NP * nb - 3].f[1] += [f"v_subrev_u32 v{WA + 2 * (nb % 2) + wi}, {(6 - w0) * SLOT}, v{VA + nb}" for wi, w0 in enumerate(wins)]
        for j, c in (parts if nb % 2 == 0 else parts[::-1]):
            wi = 0 if slot[("o", 2 * j + c)] < 4 else 1
            R.append(oslot(j, c, nb, WA + 2 * (nb % 2) + wi, wins[wi], len(R) % 2))
            if nb == 0:
                n_ = before(len(R) - 1) - 8 * (j - 1) - 4 * (c + 1)
                assert n_ >= 0
                R[-1].pre.append(f"s_waitcnt vmcnt({n_})")
    for k, x in enumerate(oloads[cfg.nup:]):
        R[at[k] // 2].f[1 + 2 * (at[k] % 2)] += x
    for c in range(K0 // 8):
        R[8 * c].pre.append(f"s_waitcnt vmcnt({before(8 * c) - 4 * (c + 1)})")

    ownw = []
    R[14].f[1] += [f"v_add_u32 v13, {slot[('v', 15)] * SLOT}, v12", "s_lshl_b32 s87, s4, 1", "s_sub_u32 s87, s60, s87"]

    def pack(np_):
        o = []
        for qb in range(2):
            t = O + 8 * (2 * (np_ % 2) + qb)
            for e in range(2):
                r = acc(2 * np_ + e, qb)
                o += [f"v_cvt_pk_bf16_f32 v{t + 2 * e}, v{r}, v{r + 1}", f"v_cvt_pk_bf16_f32 v{t + 2 * e + 1}, v{r + 2}, v{r + 3}"]
            st = f"buffer_store_dwordx4 {vr(t, 4)}, v14, s[44:47], s{37 if qb == 0 else 64} offen offset:{np_ * 1024} sc1"
            st = f"s_cmp_eq_u32 s87, {qb}\ns_cbranch_scc1 L_po{np_}{qb}\n{st}\nL_pb{np_}{qb}:"
            ownw.append(f"L_po{np_}{qb}:\nds_write_b128 v13, {vr(t, 4)} offset:{np_ * 1024}\ns_branch L_pb{np_}{qb}")
            o.append(st)
        return o
    for np_ in range(3):
        for k, x in enumerate(pack(np_)):
            g = [0, 1, 2, 4, 5, 6, 8, 9, 10, 13][k]
            R[K0 + 2 * NP * (np_ + 1) + 1 + g // 4].f[g % 4].append(x)
    add(R, None, (), "output projection: the other three heads, partial sums -> d_ws")
    flush()
    a("s_lshl_b32 s3, 1, s60\nv_mov_b32 v4, s3\ns_nop 5")
    a("\n".join(pack(3)))
    a(f"""
    s_waitcnt lgkmcnt(0)
    s_barrier
    s_waitcnt vmcnt(0)
    s_mov_b64 exec, 3
    buffer_store_dword v4, v11, s[40:43], s67 offen sc1
    s_endpgm
    {chr(10).join(ownw)}
    L_clear:
    v_mov_b32 v248, 0
    v_mov_b32 v249, 0
    v_mov_b32 v250, 0
    v_mov_b32 v251, 0
    v_lshrrev_b32 v244, 3, v0
    v_mul_u32_u24 v244, {FL}, v244
    v_and_b32 v245, 7, v0
    v_lshlrev_b32 v245, 4, v245
    v_add_u32 v244, v244, v245
    s_add_u32 s3, s66, {8 * FL}
    buffer_store_dwordx4 v[248:251], v244, s[40:43], s66 offen sc1
    buffer_store_dwordx4 v[248:251], v244, s[40:43], s3 offen sc1
    s_branch L_cleared
    L_mark:
    v_mov_b32 v244, s82
    v_mov_b32 v245, 1
    s_mov_b64 exec, 1
    s_waitcnt vmcnt(0)
    global_store_dword v244, v245, s[78:79] sc1
    s_mov_b64 exec, -1
    s_branch L_marked
    """)
    for t in range(1, 16):
        a(f"L_rare{t}:\ns_mov_b32 s16, {tileoff(cfg, t)}\ns_call_b64 s[38:39], L_redo{2 if t == 15 else t % 2}\ns_branch L_back{t}")
    for v in range(3):
        t = (2, 1, 15)[v]
        cur, nxt = S[t % 2], S[(t + 1) % 2]
        a(f"L_redo{v}:\ns_add_u32 s17, s16, 8192")
        for kb in range(4):
            ks, e = kb // 2, kb % 2
            for s_ in range(4):
                a(f"buffer_load_dwordx4 {vr(F + 16 + 4 * s_, 4)}, v{KD}, s[8:11], s{16 + ks} offen offset:{e * 1024 + s_ * 64}")
            a("s_waitcnt vmcnt(0)")
            for q in range(2):
                for s_ in range(4):
                    d = vr(blk(cur, ks, q, e), 4)
                    a(f"{MF} {d}, {vr(F + 16 + 4 * s_, 4)}, {vr(Q + 4 * (2 * s_ + q), 4)}, {d if s_ else vr(NM + 4 * q, 4)}")
        a("s_nop 7")
        a("\n".join(maxchain(cur) + rescale(cur, False, nxt if t < 15 else None, LB[(t - 1) % 2])))
        dst = cur if t < 15 else nxt
        a("\n".join(exps(cur) + cvto(cur, dst) + ones(dst, t)))
        a("s_nop 7\ns_setpc_b64 s[38:39]")


NOTES = """;
;   1. the four heads {x + 8c} of a batch exchange O; workgroup c multiplies all four by wo[:, 128c .. 128c+127]
"""


def build(cfg):
    a = Asm()
    cons, qvars, main, slot = schedule(cfg)
    a("""
    s_cmp_ge_u32 s2, 256
    s_cbranch_scc1 L_end
    s_load_dwordx8 s[48:55], s[0:1], 0
    s_load_dwordx2 s[56:57], s[0:1], 32
    s_load_dwordx2 s[58:59], s[0:1], 56
    s_load_dwordx4 s[76:79], s[0:1], 40
    v_lshrrev_b32 v1, 6, v0
    v_and_b32 v0, 63, v0
    v_readfirstlane_b32 s4, v1
    s_and_b32 s60, s2, 7
    s_lshr_b32 s61, s2, 3
    s_and_b32 s62, s61, 7
    s_lshr_b32 s69, s61, 3
    s_lshl_b32 s65, s69, 1
    s_add_u32 s65, s65, s62
    s_lshl_b32 s63, s69, 3
    s_add_u32 s63, s63, s60
    s_cmp_lt_u32 s4, 4
    s_cbranch_scc1 L_attn
    """)
    dma_waves(a, cfg, cons, qvars, main, slot)
    compute_waves(a, cfg, slot)
    a("L_end:\ns_endpgm")
    name = NAME + "_kernel"
    return (HEADER + "; @launch grid=(256,1,1) block=(512,1,1) lds=163840\n" + NOTES
            + '.amdgcn_target "amdgcn-amd-amdhsa--gfx950"\n.text\n'
            + f".globl {name}\n.p2align 8\n.type {name},@function\n{name}:\n"
            + a.text() + '.section .rodata,"a"\n.p2align 6\n' + kd(name, 256, 256))


def mk(name, **kw):
    c = Cfg()
    for k, v in kw.items():
        assert hasattr(c, k), k
        setattr(c, k, v)
    open(name, "w").write(build(c))


if __name__ == "__main__":
    mk(sys.argv[1] if len(sys.argv) > 1 else "final.s")
```

```python
from gen_y import *
b = lambda *x: sum(1 << k for k in x)
mk("v28a.s")
mk("v28b.s", kvm=((b(9, 11), b(10)), (b(11), b(16), b(17), b(14)), (0, 0)))
mk("v28e.s", kvm=((b(10), b(11)), (b(9), b(16), b(17), b(14)), (0, 0)))
```
